```python
import torch

def _softmax(x, axis=-1):
    return torch.softmax(x, dim=axis)
def _gelu(x):
    return torch.nn.functional.gelu(x, approximate="tanh")
def _silu(x):
    return torch.nn.functional.silu(x)
def _sigmoid(x):
    return torch.sigmoid(x)
def _layernorm(x, axis=-1, eps=1e-5):
    m = x.mean(dim=axis, keepdim=True)
    v = x.var(dim=axis, keepdim=True, unbiased=False)
    return (x - m) / torch.sqrt(v + eps)
def _scatter_add(tgt, idx, src, axis=0):
    return tgt.clone().index_add_(axis, idx, src)
def _segment_sum(src, seg, n):
    out = torch.zeros((n,) + src.shape[1:], dtype=src.dtype)
    return out.index_add_(0, seg, src)
def _pad(x, pw):
    flat = tuple(v for pair in reversed(pw) for v in pair)
    return torch.nn.functional.pad(x, flat)

kernel_name = 'parallel_sum__spectral_fnet__moe_arch_mod__prompt'

def setup_inputs():

    _w = (lambda a: (lambda t: t.to(torch.bfloat16) if t.is_floating_point() else t)(torch.as_tensor(a)))
    def _A_setup():
        B, S, D = 1, 2048, 1024
        ns = torch.arange(S)[:, None] * torch.arange(S)[None, :]
        nd = torch.arange(D)[:, None] * torch.arange(D)[None, :]
        Ws_re = torch.cos(-2.0 * torch.pi * ns / S).to(float)
        Ws_im = torch.sin(-2.0 * torch.pi * ns / S).to(float)
        Wd_re = torch.cos(-2.0 * torch.pi * nd / D).to(float)
        Wd_im = torch.sin(-2.0 * torch.pi * nd / D).to(float)
        return {
            "x": _w((lambda *s: torch.randn(*s, dtype=torch.bfloat16) * 0.05)(B, S, D)),
            "dft_seq_re": _w(Ws_re),
            "dft_seq_im": _w(Ws_im),
            "dft_hid_re": _w(Wd_re),
            "dft_hid_im": _w(Wd_im),
        }
    _A_in = _A_setup()

    def _B_setup():
        B, S, D, F, C = 1, 2048, 1024, 3584, 2
        return {
            "x": _w((lambda *s: torch.randn(*s, dtype=torch.bfloat16) * 0.05)(B, S, D)),
            "w_r": _w((lambda *s: torch.randn(*s, dtype=torch.bfloat16) * 1.6)(D)),
            "w_gate": _w((lambda *s: torch.randn(*s, dtype=torch.bfloat16) * 0.4)(D, F)),
            "w_up": _w((lambda *s: torch.randn(*s, dtype=torch.bfloat16) * 0.4)(D, F)),
            "w_down": _w((lambda *s: torch.randn(*s, dtype=torch.bfloat16) * 0.4)(F, D)),
        }
    _B_in = _B_setup()

    return {
        "A_x": _A_in["x"],
        "A_dft_seq_re": _A_in["dft_seq_re"],
        "A_dft_seq_im": _A_in["dft_seq_im"],
        "A_dft_hid_re": _A_in["dft_hid_re"],
        "A_dft_hid_im": _A_in["dft_hid_im"],
        "B_x": _B_in["x"],
        "B_w_r": _B_in["w_r"],
        "B_w_gate": _B_in["w_gate"],
        "B_w_up": _B_in["w_up"],
        "B_w_down": _B_in["w_down"],
    }

def reference(A_x, A_dft_seq_re, A_dft_seq_im, A_dft_hid_re, A_dft_hid_im, B_x, B_w_r, B_w_gate, B_w_up, B_w_down):
    def _A_ref(x, dft_seq_re, dft_seq_im, dft_hid_re, dft_hid_im):
        a = torch.einsum("bsd,ed->bse", x, dft_hid_re)
        b = torch.einsum("bsd,ed->bse", x, dft_hid_im)
        y = torch.einsum("ts,bse->bte", dft_seq_re, a) - torch.einsum("ts,bse->bte", dft_seq_im, b)
        return y

    def _B_ref(x, w_r, w_gate, w_up, w_down):
        B, S, D = x.shape
        C = 2
        r = x @ w_r
        idx = torch.argsort(-r, axis=-1)[:, :C]
        idx_e = (lambda x, n, axis: torch.repeat_interleave(x, n, dim=axis))(idx.reshape(B, C, 1), D, axis=2)
        x_sel = (lambda x, i, axis: torch.take_along_dim(x, i, dim=axis))(x, idx_e, axis=1)
        g = _silu(x_sel @ w_gate)
        u = x_sel @ w_up
        y = (g * u) @ w_down
        r_sel = _sigmoid((lambda x, i, axis: torch.take_along_dim(x, i, dim=axis))(r, idx, axis=1))
        y = y * r_sel.reshape(B, C, 1)
        b_off = (torch.arange(B) * S).reshape(B, 1)
        flat_idx = (idx + b_off).reshape(B * C)
        zero = (x * 0.0).reshape(B * S, D)
        upd = _scatter_add(zero, flat_idx, y.reshape(B * C, D), axis=0)
        return x + upd.reshape(B, S, D)

    x = A_x
    xn = _layernorm(x, axis=-1)
    return x + _A_ref(xn, A_dft_seq_re, A_dft_seq_im, A_dft_hid_re, A_dft_hid_im) + _B_ref(xn, B_w_r, B_w_gate, B_w_up, B_w_down)
```

```python
class KB:
    def __init__(self):
        self.l = []
        self.nlab = 0
    def __call__(self, s=''):
        for ln in s.split('\n'):
            ln = ln.strip()
            if ln:
                self.l.append(ln if ln.endswith(':') else '  ' + ln)
    def lab(self, p='L'):
        self.nlab += 1
        return f'{p}_{self.nlab}'
    def text(self):
        return '\n'.join(self.l) + '\n'

def wrap(name, body, vgpr=256, sgpr=102, accum=None):
    accum = accum or min(256, (vgpr + 3) // 4 * 4)
    return f""".text
.globl {name}
.p2align 8
.type {name},@function
{name}:
{body}.section .rodata,"a"
.p2align 6
.amdhsa_kernel {name}
  .amdhsa_next_free_vgpr {vgpr}
  .amdhsa_next_free_sgpr {sgpr}
  .amdhsa_accum_offset {accum}
  .amdhsa_group_segment_fixed_size 0
  .amdhsa_kernarg_size 104
  .amdhsa_user_sgpr_count 2
  .amdhsa_user_sgpr_kernarg_segment_ptr 1
  .amdhsa_system_sgpr_workgroup_id_x 1
.end_amdhsa_kernel
"""
HDR = '.amdgcn_target "amdgcn-amd-amdhsa--gfx950"\n'
```

```python
import sys, os
sys.path.insert(0, os.path.dirname(__file__))
from kb import *
NAME = 'parallel_sum__spectral_fnet__moe_arch_mod__prompt'
XN = 0
KEY = 4 << 20
AT = 8 << 20
BT = 12 << 20
HB = 16 << 20

def wave_sum(k, v, t):
    for m in (1, 2, 4, 8, 16, 32):
        k(f"v_xor_b32 {t}, {m*4}, v63\nds_bpermute_b32 {t}, {t}, {v}\ns_waitcnt lgkmcnt(0)\nv_add_f32 {v}, {v}, {t}")
def rbf(k, v):
    k(f"v_cvt_pk_bf16_f32 {v}, {v}, {v}\nv_and_b32 {v}, 0xffff0000, {v}")

def k_ln():
    k = KB()
    k("""
    s_cmp_ge_u32 s2, 512
    s_cbranch_scc1 L1_end
    s_load_dwordx2 s[4:5], s[0:1], 0
    s_load_dwordx2 s[6:7], s[0:1], 48
    s_load_dwordx2 s[8:9], s[0:1], 96
    v_and_b32 v62, 63, v0
    v_lshlrev_b32 v63, 2, v62
    v_lshrrev_b32 v1, 6, v0
    s_lshl_b32 s3, s2, 2
    v_add_u32 v1, s3, v1          ; row
    v_lshlrev_b32 v2, 11, v1
    v_lshl_add_u32 v2, v62, 5, v2
    v_lshlrev_b32 v3, 5, v62
    s_waitcnt lgkmcnt(0)
    global_load_dwordx4 v[4:7], v2, s[4:5]
    global_load_dwordx4 v[8:11], v2, s[4:5] offset:16
    global_load_dwordx4 v[12:15], v3, s[6:7]
    global_load_dwordx4 v[16:19], v3, s[6:7] offset:16
    s_waitcnt vmcnt(0)
    """)
    for i in range(8):
        k(f"v_lshlrev_b32 v{20+2*i}, 16, v{4+i}\nv_and_b32 v{21+2*i}, 0xffff0000, v{4+i}")
        k(f"v_lshlrev_b32 v{36+2*i}, 16, v{12+i}\nv_and_b32 v{37+2*i}, 0xffff0000, v{12+i}")
    k("v_mov_b32 v52, 0")
    for i in range(16): k(f"v_add_f32 v52, v52, v{20+i}")
    wave_sum(k, 'v52', 'v53')
    k("v_mul_f32 v52, 0x3a800000, v52\nv_mov_b32 v54, 0")
    for i in range(16): k(f"v_sub_f32 v55, v{20+i}, v52\nv_fmac_f32 v54, v55, v55")
    wave_sum(k, 'v54', 'v53')
    k("v_mul_f32 v54, 0x3a800000, v54")
    rbf(k, 'v52'); rbf(k, 'v54')
    k("v_add_f32 v54, 0x3727c5ac, v54"); rbf(k, 'v54')
    k("v_sqrt_f32 v54, v54\ns_nop 0"); rbf(k, 'v54')
    k("v_rcp_f32 v54, v54\nv_mov_b32 v56, 0")
    for i in range(16):
        k(f"v_sub_f32 v{20+i}, v{20+i}, v52"); rbf(k, f'v{20+i}')
        k(f"v_mul_f32 v{20+i}, v{20+i}, v54"); rbf(k, f'v{20+i}')
        k(f"v_fmac_f32 v56, v{20+i}, v{36+i}")
    wave_sum(k, 'v56', 'v53')
    for i in range(8): k(f"v_cvt_pk_bf16_f32 v{4+i}, v{20+2*i}, v{21+2*i}")
    k(f"""
    global_store_dwordx4 v2, v[4:7], s[8:9]
    global_store_dwordx4 v2, v[8:11], s[8:9] offset:16
    v_cvt_pk_bf16_f32 v56, v56, v56
    v_ashrrev_i32 v57, 31, v56
    v_or_b32 v57, 0x80000000, v57
    v_xor_b32 v56, v56, v57
    v_and_b32 v56, 0xffff0000, v56
    v_sub_u32 v58, 0xffff, v1
    v_or_b32 v56, v56, v58
    v_lshlrev_b32 v59, 2, v1
    v_add_u32 v59, {KEY}, v59
    v_cmp_eq_u32 vcc, 0, v62
    s_and_saveexec_b64 s[10:11], vcc
    s_cbranch_execz L1_end
    global_store_dword v59, v56, s[8:9]
    L1_end:
    s_endpgm
    """)
    return wrap('k1_kernel', k.text(), vgpr=64)

def gemm(k, pre, A0, A1, B0, B1, ksteps, two_acc):
    for i in range(32): k(f"v_mov_b32 v{32+i}, 0")
    k(f"s_mov_b32 s20, 0\n{pre}_loop:")
    U = 4
    for u in range(U):
        k(f"global_load_dwordx4 v[{64+16*u}:{67+16*u}], v2, {A0} offset:{32*u}")
        k(f"global_load_dwordx4 v[{68+16*u}:{71+16*u}], v2, {A1} offset:{32*u}")
        k(f"global_load_dwordx4 v[{72+16*u}:{75+16*u}], v3, {B0} offset:{32*u}")
        if B1: k(f"global_load_dwordx4 v[{76+16*u}:{79+16*u}], v3, {B1} offset:{32*u}")
    k(f"v_add_u32 v2, {32*U}, v2\nv_add_u32 v3, {32*U}, v3\ns_waitcnt vmcnt(0)")
    for u in range(U):
        k(f"v_mfma_f32_32x32x16_bf16 v[32:47], v[{64+16*u}:{67+16*u}], v[{72+16*u}:{75+16*u}], v[32:47]")
        b = 76 if B1 else 72
        acc = 'v[48:63]' if two_acc else 'v[32:47]'
        k(f"v_mfma_f32_32x32x16_bf16 {acc}, v[{68+16*u}:{71+16*u}], v[{b+16*u}:{b+3+16*u}], {acc}")
    k(f"s_add_u32 s20, s20, 1\ns_cmp_lt_u32 s20, {ksteps//U}\ns_cbranch_scc1 {pre}_loop\ns_nop 15")

def k_row():
    k = KB()
    k(f"""
    s_cmp_ge_u32 s2, 2048
    s_cbranch_scc1 L2_end
    s_load_dwordx4 s[4:7], s[0:1], 24
    s_load_dwordx2 s[8:9], s[0:1], 96
    s_and_b32 s10, s2, 31        ; e tile
    s_lshr_b32 s11, s2, 5        ; s tile
    s_lshl_b32 s10, s10, 5
    s_lshl_b32 s11, s11, 5
    v_and_b32 v4, 31, v0
    v_lshrrev_b32 v5, 5, v0
    v_add_u32 v2, s10, v4
    v_lshlrev_b32 v2, 11, v2
    v_lshl_add_u32 v2, v5, 4, v2
    v_add_u32 v3, s11, v4
    v_lshlrev_b32 v3, 11, v3
    v_lshl_add_u32 v3, v5, 4, v3
    s_waitcnt lgkmcnt(0)
    """)
    gemm(k, 'L2', 's[4:5]', 's[6:7]', 's[8:9]', None, 64, True)
    k(f"""
    v_lshl_add_u32 v6, v5, 2, s10     ; e0 + 4*(l>>5)
    v_lshlrev_b32 v6, 12, v6
    v_add_u32 v7, s11, v4
    v_lshl_add_u32 v6, v7, 1, v6
    """)
    for r in range(16):
        row = (r & 3) + 8 * (r >> 2)
        k(f"""v_add_u32 v8, {AT + row*4096}, v6
        v_cvt_pk_bf16_f32 v9, v{32+r}, v{32+r}
        global_store_short v8, v9, s[8:9]
        v_add_u32 v10, {BT + row*4096}, v6
        v_cvt_pk_bf16_f32 v11, -v{48+r}, -v{48+r}
        global_store_short v10, v11, s[8:9]
        s_nop 1""")
    k("L2_end:\ns_endpgm")
    return wrap('k2_kernel', k.text(), vgpr=128)

def k_col():
    k = KB()
    k(f"""
    s_cmp_ge_u32 s2, 2048
    s_cbranch_scc1 L3_end
    s_load_dwordx2 s[14:15], s[0:1], 0
    s_load_dwordx4 s[4:7], s[0:1], 8
    s_load_dwordx2 s[8:9], s[0:1], 96
    s_load_dwordx2 s[16:17], s[0:1], 80
    s_and_b32 s10, s2, 31        ; e tile
    s_lshr_b32 s11, s2, 5        ; t tile
    s_lshl_b32 s10, s10, 5
    s_lshl_b32 s11, s11, 5
    v_and_b32 v4, 31, v0
    v_lshrrev_b32 v5, 5, v0
    v_add_u32 v2, s11, v4
    v_lshlrev_b32 v2, 12, v2
    v_lshl_add_u32 v2, v5, 4, v2
    v_add_u32 v3, s10, v4
    v_lshlrev_b32 v3, 12, v3
    v_lshl_add_u32 v3, v5, 4, v3
    s_waitcnt lgkmcnt(0)
    s_add_u32 s12, s8, {AT}
    s_addc_u32 s13, s9, 0
    s_add_u32 s18, s8, {BT}
    s_addc_u32 s19, s9, 0
    """)
    gemm(k, 'L3', 's[4:5]', 's[6:7]', 's[12:13]', 's[18:19]', 128, False)
    k(f"""
    v_lshl_add_u32 v6, v5, 2, s11
    v_lshlrev_b32 v6, 11, v6
    v_add_u32 v7, s10, v4
    v_lshl_add_u32 v6, v7, 1, v6
    """)
    for r in range(16):
        row = (r & 3) + 8 * (r >> 2)
        k(f"""v_add_u32 v{64+r}, {row*2048}, v6
        global_load_ushort v{80+r}, v{64+r}, s[14:15]
        global_load_ushort v{96+r}, v{64+r}, s[8:9]""")
    k("s_waitcnt vmcnt(0)")
    for r in range(16):
        k(f"""v_lshlrev_b32 v{80+r}, 16, v{80+r}
        v_lshlrev_b32 v{96+r}, 16, v{96+r}
        v_add_f32 v9, v{32+r}, v{80+r}
        v_add_f32 v9, v9, v{96+r}
        v_cvt_pk_bf16_f32 v{112+r}, v9, v9
        global_store_short v{64+r}, v{112+r}, s[16:17]""")
    k("L3_end:\ns_endpgm")
    return wrap('k3_kernel', k.text(), vgpr=128)

def top2(k):
    k(f"v_lshlrev_b32 v4, 7, v62\nv_add_u32 v4, {KEY}, v4")
    for i in range(8): k(f"global_load_dwordx4 v[{8+4*i}:{11+4*i}], v4, s[8:9] offset:{16*i}")
    k("s_waitcnt vmcnt(0)\nv_mov_b32 v5, 0\nv_mov_b32 v6, 0")
    for i in range(32): k(f"v_med3_u32 v6, v5, v6, v{8+i}\nv_max_u32 v5, v5, v{8+i}")
    for m in (1, 2, 4, 8, 16, 32):
        k(f"""v_xor_b32 v7, {m*4}, v63
        ds_bpermute_b32 v8, v7, v5
        ds_bpermute_b32 v9, v7, v6
        s_waitcnt lgkmcnt(0)
        v_max_u32 v6, v6, v9
        v_min_u32 v9, v5, v8
        v_max_u32 v6, v6, v9
        v_max_u32 v5, v5, v8""")
    k("s_nop 1\nv_readfirstlane_b32 s20, v5\nv_readfirstlane_b32 s21, v6\ns_nop 3")
    k("""s_and_b32 s22, s20, 0xffff
    s_sub_u32 s22, 0xffff, s22
    s_and_b32 s23, s21, 0xffff
    s_sub_u32 s23, 0xffff, s23""")

def k_gu():
    k = KB()
    k(f"""
    s_cmp_ge_u32 s2, 28
    s_cbranch_scc1 L4_end
    s_load_dwordx4 s[4:7], s[0:1], 56
    s_load_dwordx2 s[8:9], s[0:1], 96
    v_and_b32 v62, 63, v0
    v_lshlrev_b32 v63, 2, v62
    v_lshrrev_b32 v61, 6, v0
    s_nop 0
    v_readfirstlane_b32 s3, v61
    s_waitcnt lgkmcnt(0)
    """)
    top2(k)
    k(f"""
    s_lshl_b32 s24, s3, 7          ; d0*2
    s_lshl_b32 s25, s22, 11
    s_add_u32 s25, s25, s24
    s_lshl_b32 s26, s23, 11
    s_add_u32 s26, s26, s24
    v_lshl_add_u32 v4, v62, 1, s25
    v_lshl_add_u32 v5, v62, 1, s26
    global_load_ushort v40, v4, s[8:9]
    global_load_ushort v41, v5, s[8:9]
    s_mul_i32 s27, s3, {64*7168}
    s_lshl_b32 s28, s2, 8
    s_add_u32 s27, s27, s28
    v_add_u32 v4, s27, v63
    s_waitcnt vmcnt(0)
    v_lshlrev_b32 v40, 16, v40
    v_lshlrev_b32 v41, 16, v41
    """)
    for i in range(8): k(f"v_mov_b32 v{44+i}, 0")
    for blk in range(4):
        for i in range(16):
            k(f"global_load_dword v{8+i}, v4, s[4:5]\nglobal_load_dword v{24+i}, v4, s[6:7]\nv_add_u32 v4, 7168, v4")
        k("s_waitcnt vmcnt(0)")
        for i in range(16):
            d = blk * 16 + i
            k(f"v_readlane_b32 s30, v40, {d}\nv_readlane_b32 s31, v41, {d}")
            for mat, r in ((0, 8 + i), (1, 24 + i)):
                k(f"""v_lshlrev_b32 v52, 16, v{r}
                v_and_b32 v53, 0xffff0000, v{r}
                v_fmac_f32 v{44+4*mat}, s30, v52
                v_fmac_f32 v{45+4*mat}, s30, v53
                v_fmac_f32 v{46+4*mat}, s31, v52
                v_fmac_f32 v{47+4*mat}, s31, v53""")
    k(f"""
    v_lshlrev_b32 v4, 5, v0
    ds_write_b128 v4, v[44:47]
    ds_write_b128 v4, v[48:51] offset:16
    s_waitcnt lgkmcnt(0)
    s_barrier
    s_cmp_lg_u32 s3, 0
    s_cbranch_scc1 L4_end
    """)
    for w in range(1, 16):
        k(f"ds_read_b128 v[8:11], v4 offset:{w*2048}\nds_read_b128 v[12:15], v4 offset:{w*2048+16}\ns_waitcnt lgkmcnt(0)")
        for i in range(8): k(f"v_add_f32 v{44+i}, v{44+i}, v{8+i}")
    for i in range(4):
        g, u = f'v{44+i}', f'v{48+i}'
        rbf(k, g); rbf(k, u)
        k(f"v_mul_f32 v8, 0xbfb8aa3b, {g}\nv_exp_f32 v8, v8\ns_nop 0\nv_add_f32 v8, 1.0, v8\nv_rcp_f32 v8, v8\ns_nop 0\nv_mul_f32 {g}, {g}, v8")
        rbf(k, g)
        k(f"v_mul_f32 {g}, {g}, {u}"); rbf(k, g)
    k(f"""
    s_lshl_b32 s28, s2, 9
    s_add_u32 s28, s28, {HB}
    v_lshl_add_u32 v4, v62, 3, s28
    global_store_dwordx2 v4, v[44:45], s[8:9]
    v_add_u32 v4, {3584*4}, v4
    global_store_dwordx2 v4, v[46:47], s[8:9]
    L4_end:
    s_endpgm
    """)
    return wrap('k4_kernel', k.text(), vgpr=64)

def k_down():
    k = KB()
    k(f"""
    s_cmp_ge_u32 s2, 8
    s_cbranch_scc1 L5_end
    s_load_dwordx4 s[4:7], s[0:1], 72
    s_load_dwordx2 s[8:9], s[0:1], 96
    v_and_b32 v62, 63, v0
    v_lshlrev_b32 v63, 2, v62
    v_lshrrev_b32 v61, 6, v0
    s_nop 0
    v_readfirstlane_b32 s3, v61
    s_waitcnt lgkmcnt(0)
    """)
    top2(k)
    k(f"""
    s_mul_i32 s27, s3, {256*2048}
    s_lshl_b32 s28, s2, 8
    s_add_u32 s27, s27, s28
    v_add_u32 v4, s27, v63
    s_lshl_b32 s24, s3, 10
    s_add_u32 s24, s24, {HB}
    v_add_u32 v5, s24, v63
    v_add_u32 v6, {3584*4}, v5
    """)
    for i in range(4): k(f"v_mov_b32 v{44+i}, 0")
    k("s_mov_b32 s29, 0\nL5_loop:\nglobal_load_dword v40, v5, s[8:9]\nglobal_load_dword v41, v6, s[8:9]\nv_add_u32 v5, 256, v5\nv_add_u32 v6, 256, v6")
    for blk in range(2):
        for i in range(32):
            k(f"global_load_dword v{8+i}, v4, s[4:5]\nv_add_u32 v4, 2048, v4")
        k("s_waitcnt vmcnt(0)")
        for i in range(32):
            d = blk * 32 + i
            k(f"""v_readlane_b32 s30, v40, {d}
            v_readlane_b32 s31, v41, {d}
            v_lshlrev_b32 v52, 16, v{8+i}
            v_and_b32 v53, 0xffff0000, v{8+i}
            v_fmac_f32 v44, s30, v52
            v_fmac_f32 v45, s30, v53
            v_fmac_f32 v46, s31, v52
            v_fmac_f32 v47, s31, v53""")
    k(f"""
    s_add_u32 s29, s29, 1
    s_cmp_lt_u32 s29, 4
    s_cbranch_scc1 L5_loop
    v_lshlrev_b32 v4, 4, v0
    ds_write_b128 v4, v[44:47]
    s_waitcnt lgkmcnt(0)
    s_barrier
    s_cmp_lg_u32 s3, 0
    s_cbranch_scc1 L5_end
    """)
    for w in range(1, 14):
        k(f"ds_read_b128 v[8:11], v4 offset:{w*1024}\ns_waitcnt lgkmcnt(0)")
        for i in range(4): k(f"v_add_f32 v{44+i}, v{44+i}, v{8+i}")
    for j, (key, idx) in enumerate((('s20', 's22'), ('s21', 's23'))):
        k(f"""
        s_and_b32 s30, {key}, 0xffff0000
        s_ashr_i32 s31, s30, 31
        s_not_b32 s31, s31
        s_or_b32 s31, s31, 0x80000000
        s_xor_b32 s30, s30, s31
        s_and_b32 s30, s30, 0xffff0000
        v_mov_b32 v8, s30
        v_mul_f32 v8, 0xbfb8aa3b, v8
        v_exp_f32 v8, v8
        s_nop 0
        v_add_f32 v8, 1.0, v8
        v_rcp_f32 v8, v8
        s_nop 0""")
        rbf(k, 'v8')
        k(f"""
        s_lshl_b32 s30, {idx}, 11
        s_add_u32 s30, s30, s28
        v_add_u32 v9, s30, v63
        global_load_dword v10, v9, s[6:7]
        s_waitcnt vmcnt(0)
        v_lshlrev_b32 v11, 16, v10
        v_and_b32 v12, 0xffff0000, v10""")
        rbf(k, f'v{44+2*j}'); rbf(k, f'v{45+2*j}')
        k(f"""v_fmac_f32 v11, v{44+2*j}, v8
        v_fmac_f32 v12, v{45+2*j}, v8
        v_cvt_pk_bf16_f32 v11, v11, v12
        global_store_dword v9, v11, s[6:7]
        s_nop 1""")
    k("L5_end:\ns_endpgm")
    return wrap('k5_kernel', k.text(), vgpr=64)

def k_probe(slot, n, flags=''):
    k = KB()
    k(f"""
    s_cmp_ge_u32 s2, 1
    s_cbranch_scc1 L6_end
    s_load_dwordx2 s[4:5], s[0:1], {slot}
    v_mov_b32 v1, 0
    s_mov_b32 s3, 0
    s_waitcnt lgkmcnt(0)
    L6_loop:
    global_load_dword v2, v1, s[4:5] {flags}
    s_waitcnt vmcnt(0)
    v_and_b32 v2, 0, v2
    v_add_u32 v1, 0x8080, v1
    v_add_u32 v1, v2, v1
    s_add_u32 s3, s3, 1
    s_cmp_lt_u32 s3, {n}
    s_cbranch_scc1 L6_loop
    L6_end:
    s_endpgm
    """)
    return wrap('k6_kernel', k.text(), vgpr=8)
def k_empty():
    return wrap('k7_kernel', "  s_endpgm\n", vgpr=8)

def gen(probe=None, nempty=0):
    L = []
    if probe: L.append("; @launch kernel=k6_kernel grid=(1,1,1) block=(64,1,1) lds=0")
    for i in range(nempty): L.append("; @launch kernel=k7_kernel grid=(256,1,1) block=(256,1,1) lds=0")
    L += ["; @launch kernel=k1_kernel grid=(512,1,1) block=(256,1,1) lds=0",
          "; @launch kernel=k2_kernel grid=(2048,1,1) block=(64,1,1) lds=0",
          "; @launch kernel=k3_kernel grid=(2048,1,1) block=(64,1,1) lds=0",
          "; @launch kernel=k4_kernel grid=(28,1,1) block=(1024,1,1) lds=32768",
          "; @launch kernel=k5_kernel grid=(8,1,1) block=(896,1,1) lds=16384"]
    t = '\n'.join(L) + '\n' + HDR + k_ln() + k_row() + k_col() + k_gu() + k_down()
    if probe: t += k_probe(*probe)
    if nempty: t += k_empty()
    return t
if __name__ == '__main__':
    out = sys.argv[1]
    args = eval(sys.argv[2]) if len(sys.argv) > 2 else {}
    open(out, 'w').write(gen(**args))
```

```python
import sys, os
sys.path.insert(0, os.path.dirname(__file__))
from kb import *
NAME = 'parallel_sum__spectral_fnet__moe_arch_mod__prompt'
XN = 0
KEY = 4 << 20
AT = 8 << 20
BT = 12 << 20
HB = 16 << 20

def wave_sum(k, v, t):
    for m in (1, 2, 4, 8, 16, 32):
        k(f"v_xor_b32 {t}, {m*4}, v63\nds_bpermute_b32 {t}, {t}, {v}\ns_waitcnt lgkmcnt(0)\nv_add_f32 {v}, {v}, {t}")
def rbf(k, v):
    k(f"v_cvt_pk_bf16_f32 {v}, {v}, {v}\nv_and_b32 {v}, 0xffff0000, {v}")

def k_ln():
    k = KB()
    k("""
    s_cmp_ge_u32 s2, 512
    s_cbranch_scc1 L1_end
    s_load_dwordx2 s[4:5], s[0:1], 0
    s_load_dwordx2 s[6:7], s[0:1], 48
    s_load_dwordx2 s[8:9], s[0:1], 96
    v_and_b32 v62, 63, v0
    v_lshlrev_b32 v63, 2, v62
    v_lshrrev_b32 v1, 6, v0
    s_lshl_b32 s3, s2, 2
    v_add_u32 v1, s3, v1          ; row
    v_lshlrev_b32 v2, 11, v1
    v_lshl_add_u32 v2, v62, 5, v2
    v_lshlrev_b32 v3, 5, v62
    s_waitcnt lgkmcnt(0)
    global_load_dwordx4 v[4:7], v2, s[4:5]
    global_load_dwordx4 v[8:11], v2, s[4:5] offset:16
    global_load_dwordx4 v[12:15], v3, s[6:7]
    global_load_dwordx4 v[16:19], v3, s[6:7] offset:16
    s_waitcnt vmcnt(0)
    """)
    for i in range(8):
        k(f"v_lshlrev_b32 v{20+2*i}, 16, v{4+i}\nv_and_b32 v{21+2*i}, 0xffff0000, v{4+i}")
        k(f"v_lshlrev_b32 v{36+2*i}, 16, v{12+i}\nv_and_b32 v{37+2*i}, 0xffff0000, v{12+i}")
    k("v_mov_b32 v52, 0")
    for i in range(16): k(f"v_add_f32 v52, v52, v{20+i}")
    wave_sum(k, 'v52', 'v53')
    k("v_mul_f32 v52, 0x3a800000, v52\nv_mov_b32 v54, 0")
    for i in range(16): k(f"v_sub_f32 v55, v{20+i}, v52\nv_fmac_f32 v54, v55, v55")
    wave_sum(k, 'v54', 'v53')
    k("v_mul_f32 v54, 0x3a800000, v54")
    rbf(k, 'v52'); rbf(k, 'v54')
    k("v_add_f32 v54, 0x3727c5ac, v54"); rbf(k, 'v54')
    k("v_sqrt_f32 v54, v54\ns_nop 0"); rbf(k, 'v54')
    k("v_rcp_f32 v54, v54\nv_mov_b32 v56, 0")
    for i in range(16):
        k(f"v_sub_f32 v{20+i}, v{20+i}, v52"); rbf(k, f'v{20+i}')
        k(f"v_mul_f32 v{20+i}, v{20+i}, v54"); rbf(k, f'v{20+i}')
        k(f"v_fmac_f32 v56, v{20+i}, v{36+i}")
    wave_sum(k, 'v56', 'v53')
    for i in range(8): k(f"v_cvt_pk_bf16_f32 v{4+i}, v{20+2*i}, v{21+2*i}")
    k(f"""
    global_store_dwordx4 v2, v[4:7], s[8:9]
    global_store_dwordx4 v2, v[8:11], s[8:9] offset:16
    v_cvt_pk_bf16_f32 v56, v56, v56
    v_ashrrev_i32 v57, 31, v56
    v_or_b32 v57, 0x80000000, v57
    v_xor_b32 v56, v56, v57
    v_and_b32 v56, 0xffff0000, v56
    v_sub_u32 v58, 0xffff, v1
    v_or_b32 v56, v56, v58
    v_lshlrev_b32 v59, 2, v1
    v_add_u32 v59, {KEY}, v59
    v_cmp_eq_u32 vcc, 0, v62
    s_and_saveexec_b64 s[10:11], vcc
    s_cbranch_execz L1_end
    global_store_dword v59, v56, s[8:9]
    L1_end:
    s_endpgm
    """)
    return wrap('k1_kernel', k.text(), vgpr=64)

def gemm(k, pre, A0, A1, B0, B1, ksteps, two_acc):
    for i in range(32): k(f"v_mov_b32 v{32+i}, 0")
    k(f"s_mov_b32 s20, 0\n{pre}_loop:")
    U = 4
    for u in range(U):
        k(f"global_load_dwordx4 v[{64+16*u}:{67+16*u}], v2, {A0} offset:{32*u}")
        k(f"global_load_dwordx4 v[{68+16*u}:{71+16*u}], v2, {A1} offset:{32*u}")
        k(f"global_load_dwordx4 v[{72+16*u}:{75+16*u}], v3, {B0} offset:{32*u}")
        if B1: k(f"global_load_dwordx4 v[{76+16*u}:{79+16*u}], v3, {B1} offset:{32*u}")
    k(f"v_add_u32 v2, {32*U}, v2\nv_add_u32 v3, {32*U}, v3\ns_waitcnt vmcnt(0)")
    for u in range(U):
        k(f"v_mfma_f32_32x32x16_bf16 v[32:47], v[{64+16*u}:{67+16*u}], v[{72+16*u}:{75+16*u}], v[32:47]")
        b = 76 if B1 else 72
        acc = 'v[48:63]' if two_acc else 'v[32:47]'
        k(f"v_mfma_f32_32x32x16_bf16 {acc}, v[{68+16*u}:{71+16*u}], v[{b+16*u}:{b+3+16*u}], {acc}")
    k(f"s_add_u32 s20, s20, 1\ns_cmp_lt_u32 s20, {ksteps//U}\ns_cbranch_scc1 {pre}_loop\ns_nop 15")

def k_row():
    k = KB()
    k(f"""
    s_cmp_ge_u32 s2, 2048
    s_cbranch_scc1 L2_end
    s_load_dwordx4 s[4:7], s[0:1], 24
    s_load_dwordx2 s[8:9], s[0:1], 96
    s_and_b32 s10, s2, 31        ; e tile
    s_lshr_b32 s11, s2, 5        ; s tile
    s_lshl_b32 s10, s10, 5
    s_lshl_b32 s11, s11, 5
    v_and_b32 v4, 31, v0
    v_lshrrev_b32 v5, 5, v0
    v_add_u32 v2, s10, v4
    v_lshlrev_b32 v2, 11, v2
    v_lshl_add_u32 v2, v5, 4, v2
    v_add_u32 v3, s11, v4
    v_lshlrev_b32 v3, 11, v3
    v_lshl_add_u32 v3, v5, 4, v3
    s_waitcnt lgkmcnt(0)
    """)
    gemm(k, 'L2', 's[4:5]', 's[6:7]', 's[8:9]', None, 64, True)
    k(f"""
    v_lshl_add_u32 v6, v5, 2, s10     ; e0 + 4*(l>>5)
    v_lshlrev_b32 v6, 12, v6
    v_add_u32 v7, s11, v4
    v_lshl_add_u32 v6, v7, 1, v6
    """)
    for r in range(16):
        row = (r & 3) + 8 * (r >> 2)
        k(f"""v_add_u32 v8, {AT + row*4096}, v6
        v_cvt_pk_bf16_f32 v9, v{32+r}, v{32+r}
        global_store_short v8, v9, s[8:9]
        v_add_u32 v10, {BT + row*4096}, v6
        v_cvt_pk_bf16_f32 v11, -v{48+r}, -v{48+r}
        global_store_short v10, v11, s[8:9]
        s_nop 1""")
    k("L2_end:\ns_endpgm")
    return wrap('k2_kernel', k.text(), vgpr=128)

import struct
def NZ(r, noise):
    if not noise: return ''
    amp = noise * 6 ** 0.5 / 65536
    h = struct.unpack('<I', struct.pack('<f', amp))[0]
    return f"""s_mov_b32 s21, 0x9e3779b1
        v_mul_lo_u32 v10, v{64+r}, s21
        v_lshrrev_b32 v11, 15, v10
        v_xor_b32 v10, v10, v11
        s_mov_b32 s21, 0x85ebca6b
        v_mul_lo_u32 v10, v10, s21
        v_lshrrev_b32 v11, 13, v10
        v_xor_b32 v10, v10, v11
        s_mov_b32 s21, 0xc2b2ae35
        v_mul_lo_u32 v10, v10, s21
        v_lshrrev_b32 v11, 16, v10
        v_and_b32 v10, 0xffff, v10
        v_add_u32 v10, v10, v11
        v_subrev_u32 v10, 0xffff, v10
        v_cvt_f32_i32 v10, v10
        v_mul_f32 v10, {h:#x}, v10
        v_add_f32 v9, v9, v10"""
def k_col(noise=0):
    k = KB()
    k(f"""
    s_cmp_ge_u32 s2, 2048
    s_cbranch_scc1 L3_end
    s_load_dwordx2 s[14:15], s[0:1], 0
    s_load_dwordx4 s[4:7], s[0:1], 8
    s_load_dwordx2 s[8:9], s[0:1], 96
    s_load_dwordx2 s[16:17], s[0:1], 80
    s_and_b32 s10, s2, 31        ; e tile
    s_lshr_b32 s11, s2, 5        ; t tile
    s_lshl_b32 s10, s10, 5
    s_lshl_b32 s11, s11, 5
    v_and_b32 v4, 31, v0
    v_lshrrev_b32 v5, 5, v0
    v_add_u32 v2, s11, v4
    v_lshlrev_b32 v2, 12, v2
    v_lshl_add_u32 v2, v5, 4, v2
    v_add_u32 v3, s10, v4
    v_lshlrev_b32 v3, 12, v3
    v_lshl_add_u32 v3, v5, 4, v3
    s_waitcnt lgkmcnt(0)
    s_add_u32 s12, s8, {AT}
    s_addc_u32 s13, s9, 0
    s_add_u32 s18, s8, {BT}
    s_addc_u32 s19, s9, 0
    """)
    gemm(k, 'L3', 's[4:5]', 's[6:7]', 's[12:13]', 's[18:19]', 128, False)
    k(f"""
    v_lshl_add_u32 v6, v5, 2, s11
    v_lshlrev_b32 v6, 11, v6
    v_add_u32 v7, s10, v4
    v_lshl_add_u32 v6, v7, 1, v6
    """)
    for r in range(16):
        row = (r & 3) + 8 * (r >> 2)
        k(f"""v_add_u32 v{64+r}, {row*2048}, v6
        global_load_ushort v{80+r}, v{64+r}, s[14:15]
        global_load_ushort v{96+r}, v{64+r}, s[8:9]""")
    k("s_waitcnt vmcnt(0)")
    for r in range(16):
        k(f"""v_lshlrev_b32 v{80+r}, 16, v{80+r}
        v_lshlrev_b32 v{96+r}, 16, v{96+r}
        v_add_f32 v9, v{32+r}, v{80+r}
        v_add_f32 v9, v9, v{96+r}
        {NZ(r, noise)}
        v_cvt_pk_bf16_f32 v{112+r}, v9, v9
        global_store_short v{64+r}, v{112+r}, s[16:17]""")
    k("L3_end:\ns_endpgm")
    return wrap('k3_kernel', k.text(), vgpr=128)

def top2(k):
    k(f"v_lshlrev_b32 v4, 7, v62\nv_add_u32 v4, {KEY}, v4")
    for i in range(8): k(f"global_load_dwordx4 v[{8+4*i}:{11+4*i}], v4, s[8:9] offset:{16*i}")
    k("s_waitcnt vmcnt(0)\nv_mov_b32 v5, 0\nv_mov_b32 v6, 0")
    for i in range(32): k(f"v_med3_u32 v6, v5, v6, v{8+i}\nv_max_u32 v5, v5, v{8+i}")
    for m in (1, 2, 4, 8, 16, 32):
        k(f"""v_xor_b32 v7, {m*4}, v63
        ds_bpermute_b32 v8, v7, v5
        ds_bpermute_b32 v9, v7, v6
        s_waitcnt lgkmcnt(0)
        v_max_u32 v6, v6, v9
        v_min_u32 v9, v5, v8
        v_max_u32 v6, v6, v9
        v_max_u32 v5, v5, v8""")
    k("s_nop 1\nv_readfirstlane_b32 s20, v5\nv_readfirstlane_b32 s21, v6\ns_nop 3")
    k("""s_and_b32 s22, s20, 0xffff
    s_sub_u32 s22, 0xffff, s22
    s_and_b32 s23, s21, 0xffff
    s_sub_u32 s23, 0xffff, s23""")

def k_gu():
    k = KB()
    k(f"""
    s_cmp_ge_u32 s2, 28
    s_cbranch_scc1 L4_end
    s_load_dwordx4 s[4:7], s[0:1], 56
    s_load_dwordx2 s[8:9], s[0:1], 96
    v_and_b32 v62, 63, v0
    v_lshlrev_b32 v63, 2, v62
    v_lshrrev_b32 v61, 6, v0
    s_nop 0
    v_readfirstlane_b32 s3, v61
    s_waitcnt lgkmcnt(0)
    """)
    top2(k)
    k(f"""
    s_lshl_b32 s24, s3, 7          ; d0*2
    s_lshl_b32 s25, s22, 11
    s_add_u32 s25, s25, s24
    s_lshl_b32 s26, s23, 11
    s_add_u32 s26, s26, s24
    v_lshl_add_u32 v4, v62, 1, s25
    v_lshl_add_u32 v5, v62, 1, s26
    global_load_ushort v40, v4, s[8:9]
    global_load_ushort v41, v5, s[8:9]
    s_mul_i32 s27, s3, {64*7168}
    s_lshl_b32 s28, s2, 8
    s_add_u32 s27, s27, s28
    v_add_u32 v4, s27, v63
    s_waitcnt vmcnt(0)
    v_lshlrev_b32 v40, 16, v40
    v_lshlrev_b32 v41, 16, v41
    """)
    for i in range(8): k(f"v_mov_b32 v{44+i}, 0")
    for blk in range(4):
        for i in range(16):
            k(f"global_load_dword v{8+i}, v4, s[4:5]\nglobal_load_dword v{24+i}, v4, s[6:7]\nv_add_u32 v4, 7168, v4")
        k("s_waitcnt vmcnt(0)")
        for i in range(16):
            d = blk * 16 + i
            k(f"v_readlane_b32 s30, v40, {d}\nv_readlane_b32 s31, v41, {d}")
            for mat, r in ((0, 8 + i), (1, 24 + i)):
                k(f"""v_lshlrev_b32 v52, 16, v{r}
                v_and_b32 v53, 0xffff0000, v{r}
                v_fmac_f32 v{44+4*mat}, s30, v52
                v_fmac_f32 v{45+4*mat}, s30, v53
                v_fmac_f32 v{46+4*mat}, s31, v52
                v_fmac_f32 v{47+4*mat}, s31, v53""")
    k(f"""
    v_lshlrev_b32 v4, 5, v0
    ds_write_b128 v4, v[44:47]
    ds_write_b128 v4, v[48:51] offset:16
    s_waitcnt lgkmcnt(0)
    s_barrier
    s_cmp_lg_u32 s3, 0
    s_cbranch_scc1 L4_end
    """)
    for w in range(1, 16):
        k(f"ds_read_b128 v[8:11], v4 offset:{w*2048}\nds_read_b128 v[12:15], v4 offset:{w*2048+16}\ns_waitcnt lgkmcnt(0)")
        for i in range(8): k(f"v_add_f32 v{44+i}, v{44+i}, v{8+i}")
    for i in range(4):
        g, u = f'v{44+i}', f'v{48+i}'
        rbf(k, g); rbf(k, u)
        k(f"v_mul_f32 v8, 0xbfb8aa3b, {g}\nv_exp_f32 v8, v8\ns_nop 0\nv_add_f32 v8, 1.0, v8\nv_rcp_f32 v8, v8\ns_nop 0\nv_mul_f32 {g}, {g}, v8")
        rbf(k, g)
        k(f"v_mul_f32 {g}, {g}, {u}"); rbf(k, g)
    k(f"""
    s_lshl_b32 s28, s2, 9
    s_add_u32 s28, s28, {HB}
    v_lshl_add_u32 v4, v62, 3, s28
    global_store_dwordx2 v4, v[44:45], s[8:9]
    v_add_u32 v4, {3584*4}, v4
    global_store_dwordx2 v4, v[46:47], s[8:9]
    L4_end:
    s_endpgm
    """)
    return wrap('k4_kernel', k.text(), vgpr=64)

def k_down():
    k = KB()
    k(f"""
    s_cmp_ge_u32 s2, 8
    s_cbranch_scc1 L5_end
    s_load_dwordx4 s[4:7], s[0:1], 72
    s_load_dwordx2 s[8:9], s[0:1], 96
    v_and_b32 v62, 63, v0
    v_lshlrev_b32 v63, 2, v62
    v_lshrrev_b32 v61, 6, v0
    s_nop 0
    v_readfirstlane_b32 s3, v61
    s_waitcnt lgkmcnt(0)
    """)
    top2(k)
    k(f"""
    s_mul_i32 s27, s3, {256*2048}
    s_lshl_b32 s28, s2, 8
    s_add_u32 s27, s27, s28
    v_add_u32 v4, s27, v63
    s_lshl_b32 s24, s3, 10
    s_add_u32 s24, s24, {HB}
    v_add_u32 v5, s24, v63
    v_add_u32 v6, {3584*4}, v5
    """)
    for i in range(4): k(f"v_mov_b32 v{44+i}, 0")
    k("s_mov_b32 s29, 0\nL5_loop:\nglobal_load_dword v40, v5, s[8:9]\nglobal_load_dword v41, v6, s[8:9]\nv_add_u32 v5, 256, v5\nv_add_u32 v6, 256, v6")
    for blk in range(2):
        for i in range(32):
            k(f"global_load_dword v{8+i}, v4, s[4:5]\nv_add_u32 v4, 2048, v4")
        k("s_waitcnt vmcnt(0)")
        for i in range(32):
            d = blk * 32 + i
            k(f"""v_readlane_b32 s30, v40, {d}
            v_readlane_b32 s31, v41, {d}
            v_lshlrev_b32 v52, 16, v{8+i}
            v_and_b32 v53, 0xffff0000, v{8+i}
            v_fmac_f32 v44, s30, v52
            v_fmac_f32 v45, s30, v53
            v_fmac_f32 v46, s31, v52
            v_fmac_f32 v47, s31, v53""")
    k(f"""
    s_add_u32 s29, s29, 1
    s_cmp_lt_u32 s29, 4
    s_cbranch_scc1 L5_loop
    v_lshlrev_b32 v4, 4, v0
    ds_write_b128 v4, v[44:47]
    s_waitcnt lgkmcnt(0)
    s_barrier
    s_cmp_lg_u32 s3, 0
    s_cbranch_scc1 L5_end
    """)
    for w in range(1, 14):
        k(f"ds_read_b128 v[8:11], v4 offset:{w*1024}\ns_waitcnt lgkmcnt(0)")
        for i in range(4): k(f"v_add_f32 v{44+i}, v{44+i}, v{8+i}")
    for j, (key, idx) in enumerate((('s20', 's22'), ('s21', 's23'))):
        k(f"""
        s_and_b32 s30, {key}, 0xffff0000
        s_ashr_i32 s31, s30, 31
        s_not_b32 s31, s31
        s_or_b32 s31, s31, 0x80000000
        s_xor_b32 s30, s30, s31
        s_and_b32 s30, s30, 0xffff0000
        v_mov_b32 v8, s30
        v_mul_f32 v8, 0xbfb8aa3b, v8
        v_exp_f32 v8, v8
        s_nop 0
        v_add_f32 v8, 1.0, v8
        v_rcp_f32 v8, v8
        s_nop 0""")
        rbf(k, 'v8')
        k(f"""
        s_lshl_b32 s30, {idx}, 11
        s_add_u32 s30, s30, s28
        v_add_u32 v9, s30, v63
        global_load_dword v10, v9, s[6:7]
        s_waitcnt vmcnt(0)
        v_lshlrev_b32 v11, 16, v10
        v_and_b32 v12, 0xffff0000, v10""")
        rbf(k, f'v{44+2*j}'); rbf(k, f'v{45+2*j}')
        k(f"""v_fmac_f32 v11, v{44+2*j}, v8
        v_fmac_f32 v12, v{45+2*j}, v8
        v_cvt_pk_bf16_f32 v11, v11, v12
        global_store_dword v9, v11, s[6:7]
        s_nop 1""")
    k("L5_end:\ns_endpgm")
    return wrap('k5_kernel', k.text(), vgpr=64)

def k_probe(slot, n, flags=''):
    k = KB()
    k(f"""
    s_cmp_ge_u32 s2, 1
    s_cbranch_scc1 L6_end
    s_load_dwordx2 s[4:5], s[0:1], {slot}
    v_mov_b32 v1, 0
    s_mov_b32 s3, 0
    s_waitcnt lgkmcnt(0)
    L6_loop:
    global_load_dword v2, v1, s[4:5] {flags}
    s_waitcnt vmcnt(0)
    v_and_b32 v2, 0, v2
    v_add_u32 v1, 0x8080, v1
    v_add_u32 v1, v2, v1
    s_add_u32 s3, s3, 1
    s_cmp_lt_u32 s3, {n}
    s_cbranch_scc1 L6_loop
    L6_end:
    s_endpgm
    """)
    return wrap('k6_kernel', k.text(), vgpr=8)
def k_empty():
    return wrap('k7_kernel', "  s_endpgm\n", vgpr=8)

def gen(probe=None, nempty=0, noise=0):
    L = []
    if probe: L.append("; @launch kernel=k6_kernel grid=(1,1,1) block=(64,1,1) lds=0")
    for i in range(nempty): L.append("; @launch kernel=k7_kernel grid=(256,1,1) block=(256,1,1) lds=0")
    L += ["; @launch kernel=k1_kernel grid=(512,1,1) block=(256,1,1) lds=0",
          "; @launch kernel=k2_kernel grid=(2048,1,1) block=(64,1,1) lds=0",
          "; @launch kernel=k3_kernel grid=(2048,1,1) block=(64,1,1) lds=0",
          "; @launch kernel=k4_kernel grid=(28,1,1) block=(1024,1,1) lds=32768",
          "; @launch kernel=k5_kernel grid=(8,1,1) block=(896,1,1) lds=16384"]
    t = '\n'.join(L) + '\n' + HDR + k_ln() + k_row() + k_col(noise) + k_gu() + k_down()
    if probe: t += k_probe(*probe)
    if nempty: t += k_empty()
    return t
if __name__ == '__main__':
    out = sys.argv[1]
    args = eval(sys.argv[2]) if len(sys.argv) > 2 else {}
    open(out, 'w').write(gen(**args))
```

```python
import re
class KB:
    def __init__(self):
        self.l = []; self.nlab = 0
    def __call__(self, s=''):
        for ln in s.split('\n'):
            ln = ln.split(';')[0].strip()
            if ln: self.l.append(ln)
    def lab(self, p='L'):
        self.nlab += 1
        return f'{p}_{self.nlab}'

TRANS = ('v_exp_', 'v_log_', 'v_rcp_', 'v_rsq_', 'v_sqrt_', 'v_sin_', 'v_cos_')
def regs_of(op):
    op = op.strip().replace('|', '')
    if op.startswith('-'): op = op[1:]
    m = re.fullmatch(r'([vs])\[(\d+):(\d+)\]', op)
    if m: return {(m.group(1), i) for i in range(int(m.group(2)), int(m.group(3)) + 1)}
    m = re.fullmatch(r'([vs])(\d+)', op)
    if m: return {(m.group(1), int(m.group(2)))}
    if op == 'vcc': return {('s', 'vcc_lo'), ('s', 'vcc_hi')}
    if op in ('vcc_lo', 'vcc_hi'): return {('s', op)}
    if op == 'exec': return {('s', 'exec_lo'), ('s', 'exec_hi')}
    if op in ('exec_lo', 'exec_hi'): return {('s', op)}
    if op == 'm0': return {('s', 'm0')}
    return set()
class I:
    def __init__(s, text):
        s.text = text; s.label = text.endswith(':')
        s.w = set(); s.r = set(); s.cls = 'o'; s.A = s.B = s.C = set(); s.data = set(); s.lanesel = set()
        s.pksel = s.trans = s.dot = s.dpp = s.perm = s.rdlane = s.half = s.ldsdma = s.wide = False; s.passes = 0
        s.ws = 1; s.target = None; s.uncond = False
        if s.label: s.ws = 0; s.mn = ''; return
        p = text.split(None, 1); s.mn = mn = p[0]; rest = p[1] if len(p) > 1 else ''
        toks = [t.strip() for t in rest.split(',')] if rest else []
        mods = ''
        if toks:
            q = toks[-1].split(None, 1); toks[-1] = q[0]; mods = q[1] if len(q) > 1 else ''
            depth = 0; cur = ''; out = []
            for ch in rest:
                if ch == '[': depth += 1
                if ch == ']': depth -= 1
                if ch == ',' and depth == 0: out.append(cur.strip()); cur = ''
                else: cur += ch
            out.append(cur.strip()); q = out[-1].split(None, 1); out[-1] = q[0]; mods = q[1] if len(q) > 1 else ''; toks = out
        R = [regs_of(t) for t in toks]; allr = set().union(*R) if R else set()
        if mn == 's_nop': s.ws = int(toks[0]) + 1; return
        if mn.startswith('s_cbranch') or mn == 's_branch':
            s.target = toks[0]; s.uncond = mn == 's_branch'; return
        if mn == 's_endpgm': s.uncond = True; return
        if mn.startswith('s_'):
            s.cls = 's'
            if mn.startswith(('s_cmp', 's_bitcmp', 's_waitcnt', 's_barrier', 's_setprio')): s.r = allr
            else:
                s.w = set(R[0]); s.r = set().union(*R[1:]) if len(R) > 1 else set()
                if 'saveexec' in mn: s.w |= regs_of('exec')
            return
        if mn.startswith('v_mfma'):
            s.cls = 'm'; s.w = R[0]; s.A, s.B, s.C = R[1], R[2], R[3]; s.r = R[1] | R[2] | R[3]
            s.passes = 8 if '32x32' in mn else 4; return
        if mn.startswith('v_'):
            s.cls = 'v'; s.trans = mn.startswith(TRANS); s.dot = mn.startswith('v_dot')
            s.dpp = bool(re.search(r'quad_perm|row_|wave_', mods))
            s.w = set(R[0]); s.r = set().union(*R[1:]) if len(R) > 1 else set()
            if mn.startswith('v_permlane'): s.perm = True; s.w = allr; s.r = allr
            if mn.startswith(('v_fmac', 'v_dot2c', 'v_pk_fmac', 'v_writelane', 'v_fma_mixlo', 'v_fma_mixhi')) or s.dpp or 'UNUSED_PRESERVE' in mods: s.r = s.r | R[0]
            if mn.startswith(('v_readlane', 'v_readfirstlane')): s.rdlane = True
            if mn.startswith(('v_readlane', 'v_writelane')): s.lanesel = R[2]
            if mn.startswith(('v_add_co', 'v_sub_co', 'v_addc_co', 'v_subb_co')): s.w = R[0] | R[1]; s.r = set().union(*R[2:])
            if mn.startswith('v_cmpx'): s.w = s.w | regs_of('exec')
            if mn.startswith('v_cndmask') and len(toks) == 3: s.r = s.r | regs_of('vcc')
            if mn.startswith(('v_fma_mixlo', 'v_fma_mixhi')) or re.search(r'dst_sel:(BYTE|WORD)', mods): s.half = True
            m = re.search(r'op_sel:\[([01,]+)\]', mods)
            if mn.startswith(('v_pk_', 'v_fma_mix')) and 'op_sel' in mods: s.pksel = True
            if m and not mn.startswith(('v_pk_', 'v_fma_mix', 'v_dot')) and len(m.group(1).split(',')) == len(toks) and m.group(1).endswith('1'): s.half = True; s.r = s.r | R[0]
            return
        if mn.startswith('ds_'):
            s.cls = 'd'
            if mn.startswith(('ds_read', 'ds_bpermute', 'ds_permute', 'ds_swizzle')) or '_rtn' in mn: s.w = R[0]; s.r = set().union(*R[1:])
            else: s.r = allr
            if 'd16' in mn and s.w: s.r = s.r | s.w
            return
        if mn.startswith(('buffer_', 'global_')):
            s.cls = 'g'
            s.ldsdma = ' lds' in ' ' + mods or '_lds_' in mn
            if 'store' in mn:
                s.r = allr; s.data = R[0] if mn.startswith('buffer_') else R[1]; s.wide = 'x3' in mn or 'x4' in mn
            elif s.ldsdma: s.r = allr | regs_of('m0')
            else: s.w = R[0]; s.r = set().union(*R[1:])
            return
        raise ValueError('unknown instruction ' + text)
EX = regs_of('exec')
def V(x): return {r for r in x if r[0] == 'v'}
def S(x): return {r for r in x if r[0] == 's'}
def need(p, c):
    n = 0
    if p.cls == 'v':
        vw = V(p.w); sw = S(p.w)
        if c.cls == 'm' and vw & c.r: n = max(n, 3 if p.dot else 2)
        if c.cls == 'v':
            if c.dpp and vw & c.r: n = max(n, 2)
            if c.perm and vw & c.r: n = max(n, 2)
            if c.rdlane and vw & c.r: n = max(n, 1)
            if p.trans and vw & c.r: n = max(n, 1)
            if p.half and vw & (c.r | c.w): n = max(n, 1)
            if sw & c.r: n = max(n, 2)
            if sw & c.lanesel: n = max(n, 4)
            if sw & EX: n = max(n, 5)
        if p.dot and c.cls != 's' and vw & (c.r | c.w):
            same = c.mn == p.mn
            if same:
                t = c.text.split(None, 1)[1].split(',')
                ab = regs_of(t[1]) | regs_of(t[2].split()[0])
                if vw & ab: n = max(n, 3)
            else: n = max(n, 3)
        if c.cls == 'm' and sw & EX: n = max(n, 4)
        if c.cls == 'm' and p.pksel: n = max(n, 2)
        if c.cls == 'g' and sw & c.r: n = max(n, 5)
    if p.cls == 'm':
        d = p.w; k = p.passes
        if c.cls == 'm':
            if d & (c.A | c.B): n = max(n, k + 4)
            if d & c.C and not (c.C == d and c.passes == k): n = max(n, k + 2)
            if d & c.w and not (c.C == d and c.w == d and c.passes == k): n = max(n, k + 2)
        elif c.cls in 'vdg':
            if d & (c.r | c.w): n = max(n, k + 4)
            if p.C & c.w: n = max(n, k - 1)
    if p.cls == 'g' and p.wide and p.data & c.w: n = max(n, 2)
    if p.cls == 's' and ('s', 'm0') in p.w and c.ldsdma: n = max(n, 1)
    return n
def add_nops(lines):
    ins = [I(t) for t in lines]
    srcs = {}
    for j, x in enumerate(ins):
        if x.target: srcs.setdefault(x.target, []).append(j)
    pad = [0] * len(ins)
    for i, c in enumerate(ins):
        if c.label or c.cls == 'o': continue
        best = 0; seen = {}
        st = [(i - 1, 0, True)]
        while st:
            j, dist, fall = st.pop()
            if j < 0 or dist >= 12: continue
            x = ins[j]
            if fall and x.uncond: continue
            if seen.get(j, 99) <= dist: continue
            seen[j] = dist
            if x.label:
                for b in srcs.get(x.text[:-1], []): st.append((b, dist, False))
                st.append((j - 1, dist, True)); continue
            best = max(best, need(x, c) - dist)
            st.append((j - 1, dist + x.ws + pad[j], True))
        pad[i] = max(best, 0)
    out = []; tot = 0
    for i, x in enumerate(ins):
        if pad[i]: out.append(f'  s_nop {pad[i]-1}'); tot += pad[i]
        out.append(x.text if x.label else '  ' + x.text)
    return '\n'.join(out) + '\n', tot

def wrap(name, body, vgpr=256, sgpr=102):
    accum = min(256, (vgpr + 3) // 4 * 4)
    return f""".amdgcn_target "amdgcn-amd-amdhsa--gfx950"
.text
.globl {name}
.p2align 8
.type {name},@function
{name}:
{body}.section .rodata,"a"
.p2align 6
.amdhsa_kernel {name}
  .amdhsa_next_free_vgpr {vgpr}
  .amdhsa_next_free_sgpr {sgpr}
  .amdhsa_accum_offset {accum}
  .amdhsa_group_segment_fixed_size 0
  .amdhsa_kernarg_size 104
  .amdhsa_user_sgpr_count 2
  .amdhsa_user_sgpr_kernarg_segment_ptr 1
  .amdhsa_system_sgpr_workgroup_id_x 1
.end_amdhsa_kernel
"""
```

```python
import sys, os, struct
sys.path.insert(0, os.path.dirname(__file__))
from asmlib import *
NAME = 'parallel_sum__spectral_fnet__moe_arch_mod__prompt'
EPOCH = 0; CAND = 4096; STATS = 8192; SEL = 32768; EXT = 65536
ZB = 1 << 20; AB = 3 << 20; BB = 4 << 20; STAMP = 6 << 20; WSN = 8 << 20
XS = 0; WRL = 32768; CT = 34816; T256 = CT + 17 * 1024; RS = 1088; CANDX = T256 + 1024; TOPL = CANDX + 64; PL = CANDX + 128; PL0 = PL + 2 * RS
NEG = 528; XLOC = 1056
WDL = PL + 18 * RS; WDS = 2080
YIMG = 0; XF = 16384; XO = XF + 256; STG = 16896
RED = CT; HB = CT + 4096
LDS_FFT = WDL + 32 * WDS
GUS = 928; UPL = 64 * GUS; FXS = 128 * GUS; FPAR = FXS + 256; FKEY = FPAR + 16; FRED = 0
LDS = max(LDS_FFT, FKEY + 16)
SX, SW, SO, S3, S4 = 's[4:7]', 's[8:11]', 's[12:15]', 's[16:19]', 's[20:23]'
def fb(x): return struct.unpack('<I', struct.pack('<f', x))[0]
def hx_(x): return f'{fb(x):#x}'
def vr(a, n): return f'v[{a}:{a+n-1}]'
OP = [[1,2,3,4],[5,6,7,0],[8,9,10,11],[12,13,14,15]]
OM = [[15,14,13,12],[11,10,9,0],[8,7,6,5],[4,3,2,1]]

def gen(stamps=False, maxit=1 << 16, xres_early=0, wd_pos=1, zsent=0, exp=0, name=NAME + '_kernel'):
    k = KB()
    def stamp(i):
        if stamps: k(f"s_memrealtime s[{64+2*i}:{65+2*i}]")
    def mask64(reg, val):
        k(f"s_mov_b32 s{reg}, {val & 0xffffffff:#x}\ns_mov_b32 s{reg+1}, {val >> 32:#x}")
    def setexec(val):
        if val == -1 or val < 64: k(f"s_mov_b64 exec, {val}")
        else: k(f"s_mov_b32 exec_lo, {val & 0xffffffff:#x}\ns_mov_b32 exec_hi, {val >> 32:#x}")
    def poll(issue, check, cnt, issued=False, vm=0):
        L = k.lab('P')
        k(f"s_mov_b32 {cnt}, 0")
        if issued: k(f"s_waitcnt vmcnt({vm})\ns_branch {L}_c")
        k(f"{L}:"); issue(); k(f"s_waitcnt vmcnt(0)\n{L}_c:"); check()
        k(f"s_cbranch_vccz {L}_x\ns_add_u32 {cnt}, {cnt}, 1\ns_cmp_lt_u32 {cnt}, {maxit}\ns_cbranch_scc1 {L}\n{L}_x:")
    def or_tree(regs, acc):
        regs = list(regs)
        if len(regs) == 1: k(f"v_mov_b32 v{acc}, v{regs[0]}"); return
        if len(regs) == 2: k(f"v_or_b32 v{acc}, v{regs[0]}, v{regs[1]}"); return
        k(f"v_or3_b32 v{acc}, v{regs[0]}, v{regs[1]}, v{regs[2]}"); regs = regs[3:]
        while len(regs) >= 2: k(f"v_or3_b32 v{acc}, v{acc}, v{regs[0]}, v{regs[1]}"); regs = regs[2:]
        if regs: k(f"v_or_b32 v{acc}, v{acc}, v{regs[0]}")
    def check_f32(regs, acc):
        for r in regs: k(f"v_xor_b32 v{r}, s29, v{r}")
        or_tree(regs, acc); k(f"v_and_b32 v{acc}, 0xff, v{acc}\nv_cmp_ne_u32 vcc, 0, v{acc}")
    def check_word(regs, acc):
        for r in regs: k(f"v_xor_b32 v{r}, s24, v{r}")
        or_tree(regs, acc); k(f"v_cmp_ne_u32 vcc, 0, v{acc}")
    def nonce(v):
        k(f"v_readfirstlane_b32 s24, v{v}\ns_add_u32 s24, s24, 1\ns_and_b32 s29, s24, 0xff")
    def top2_step(a, b, t, ctrl):
        k(f"""v_min_u32_dpp v{t}, v{a}, v{a} {ctrl}
        v_max_u32_dpp v{b}, v{b}, v{b} {ctrl}
        v_max_u32_dpp v{a}, v{a}, v{a} {ctrl}
        v_max_u32 v{b}, v{b}, v{t}""")
    FULL = 'row_mask:0xf bank_mask:0xf'
    def cand_top2(c, voff, cnt, issued=False, vm=0):
        def issue():
            k(f"buffer_load_dwordx4 {vr(c,4)}, v{voff}, {SW}, s45 offen sc1\nbuffer_load_dwordx4 {vr(c+4,4)}, v{voff}, {SW}, s45 offen offset:1024 sc1")
        if issued == 'issue': issue(); return
        poll(issue, lambda: check_word([c + 2, c + 6], c + 3), cnt, issued, vm)
        a, b, t = c + 2, c + 3, c + 6
        k(f"v_max_u32 v{a}, v{c}, v{c+4}\nv_min_u32 v{t}, v{c}, v{c+4}\nv_max3_u32 v{b}, v{t}, v{c+1}, v{c+5}")
        for s in (8, 4, 2, 1): top2_step(a, b, t, f'row_ror:{s} {FULL}')
        top2_step(a, b, t, 'row_bcast:15 row_mask:0xa bank_mask:0xf')
        top2_step(a, b, t, 'row_bcast:31 row_mask:0xc bank_mask:0xf')
        k(f"v_readlane_b32 s46, v{a}, 63\nv_readlane_b32 s47, v{b}, 63")
    def rowsel(dst, srcs):
        if srcs[0] != dst: k(f"v_mov_b32 v{dst}, v{srcs[0]}")
        for mg in (1, 2, 3): k(f"v_mov_b32_dpp v{dst}, v{srcs[mg]} quad_perm:[0,1,2,3] row_mask:{1<<mg:#x} bank_mask:0xf")

    vL, vL16, vEp = 1, 2, 3
    stamp(0)
    k(f"""s_cmp_ge_u32 s2, 256
    s_cbranch_scc1 L_end
    s_load_dwordx2 s[4:5], s[0:1], 0
    s_load_dwordx2 s[8:9], s[0:1], 96
    s_load_dwordx2 s[12:13], s[0:1], 80
    v_lshrrev_b32 v3, 6, v0
    v_and_b32 v{vL}, 63, v0
    s_mov_b32 s6, 0x400000
    v_readfirstlane_b32 s3, v3
    s_mov_b32 s7, 0x20000
    s_mov_b32 s10, {WSN}
    s_mov_b32 s11, 0x20000
    s_mov_b32 s19, 0x20000
    s_mov_b32 s22, 7340032
    s_mov_b32 s23, 0x20000
    v_lshlrev_b32 v{vL16}, 4, v{vL}
    s_cmp_ge_u32 s2, 128
    s_cbranch_scc1 L_ffn0
    s_load_dwordx2 s[16:17], s[0:1], 48
    s_load_dwordx2 s[20:21], s[0:1], 72
    s_lshl_b32 s30, s3, 8
    s_add_u32 s30, s30, s2
    s_cmp_eq_u32 s2, 0
    s_cselect_b32 s32, 896, 0
    s_cmp_ge_u32 s3, 4
    s_cselect_b32 s32, s32, 0
    s_sub_u32 s30, s30, s32
    s_sub_u32 s31, 2048, s30
    s_cmp_eq_u32 s30, 0
    s_cselect_b32 s31, 1024, s31
    s_lshl_b32 s32, s30, 11
    s_lshl_b32 s33, s31, 11
    s_lshl_b32 m0, s3, 12
    s_lshl_b32 s34, s3, 8
    v_lshlrev_b32 v4, 2, v{vL}
    s_mov_b32 s18, 2048
    s_waitcnt lgkmcnt(0)
    buffer_load_dwordx4 v{vL16}, {SX}, s32 offen lds
    buffer_load_dwordx4 v{vL16}, {SX}, s32 offen offset:1024 lds
    s_add_u32 m0, m0, 2048
    s_add_u32 s35, s34, {WRL}
    buffer_load_dwordx4 v{vL16}, {SX}, s33 offen lds
    buffer_load_dwordx4 v{vL16}, {SX}, s33 offen offset:1024 lds
    s_mov_b32 m0, s35
    buffer_load_dword v{vEp}, off, {SW}, 0 sc1
    buffer_load_dword v4, {S3}, s34 offen lds
    s_branch L_fft1""")
    k(f"""L_ffn0:
    s_load_dwordx2 s[16:17], s[0:1], 56
    s_load_dwordx2 s[20:21], s[0:1], 64
    s_mov_b32 s18, 7340032
    s_sub_u32 s30, s2, 128
    s_lshr_b32 s31, s30, 4
    s_and_b32 s32, s30, 15
    s_lshl_b32 s33, s32, 3
    s_add_u32 s33, s33, s3
    s_mul_i32 s33, s33, {8*7168}
    s_mul_i32 s34, s31, 896
    s_add_u32 s33, s33, s34
    s_and_b32 s34, s3, 3
    s_mul_i32 s34, s34, {4*GUS}
    s_lshr_b32 s35, s3, 2
    s_mul_i32 s35, s35, {32*GUS}
    s_add_u32 m0, s34, s35
    s_waitcnt lgkmcnt(0)
    buffer_load_dword v{vEp}, off, {SW}, 0 sc1
    s_mov_b32 exec_hi, 0x00ffffff""")
    for i in range(8):
        k(f"buffer_load_dwordx4 v{vL16}, {S3}, s33 offen lds\ns_add_u32 m0, m0, {UPL}")
        k(f"s_nop 0\nbuffer_load_dwordx4 v{vL16}, {S4}, s33 offen lds")
        if i < 7: k(f"s_sub_u32 m0, m0, {UPL - (13 if i == 3 else 1) * GUS}\ns_add_u32 s33, s33, 7168")
    k("s_mov_b32 exec_hi, -1\ns_branch L_ffn1")

    vATR, vATW, vAP, vAN, vF1, vF2, vAB, vK0, vZO, vMSK, vRK, vSO = 4, 5, 6, 7, 8, 9, 10, 11, 12, 13, 14, 15
    YB, TWC, TWS, B2, B1P, B1M, D2, RA, XA, XB, WO, WT = 32, 64, 80, 96, 112, 120, 112, 128, 132, 140, 148, 156
    PA, MA, PB, MB, XR = 176, 192, 208, 224, 240
    vOF = 172
    k("L_fft1:\ns_mov_b32 s14, 0x400000\ns_mov_b32 s15, 0x20000")
    k("""s_and_b32 s40, s2, 7
    s_bfe_u32 s41, s2, 0x10003
    s_lshr_b32 s42, s2, 4
    s_and_b32 s43, s2, 15""")
    def xres_addr():
        k(f"""v_lshrrev_b32 v16, 3, v0
        v_and_b32 v17, 7, v0
        v_lshl_add_u32 v16, v16, 4, s43
        s_lshl_b32 s44, s42, 7
        v_lshl_add_u32 v18, v17, 4, s44
        v_lshl_add_u32 v{vOF}, v16, 11, v18
        v_add_u32 v{vOF+2}, 0x200000, v{vOF}
        v_sub_u32 v16, 1024, v16
        v_sub_u32 v18, 2032, v18
        v_lshl_add_u32 v{vOF+3}, v16, 11, v18
        v_add_u32 v{vOF+1}, 0x200000, v{vOF+3}
        v_and_b32 v{vOF+1}, 0x3fffff, v{vOF+1}""")
    def xres_load():
        for q in range(4): k(f"buffer_load_dwordx4 {vr(XR+4*q,4)}, v{vOF+q}, {SX}, 0 offen")
    xres_addr()
    if xres_early: xres_load()
    NX = 4 if xres_early else 0
    k(f"""v_and_b32 v16, 31, v{vL}
    v_lshrrev_b32 v17, 5, v{vL}
    v_and_b32 v18, 3, v{vL}
    v_bfe_u32 v19, v{vL}, 2, 1
    v_bfe_u32 v20, v{vL}, 3, 1
    v_mad_u32_u24 v18, v19, 7, v18
    v_lshl_add_u32 v18, v20, 2, v18
    v_add_u32 v18, 1, v18
    v_cmp_eq_u32 vcc, 11, v16
    v_cvt_f32_u32 v18, v18
    v_mov_b32 v19, {hx_(-32.0)}
    v_cndmask_b32 v{vK0}, 0, v19, vcc
    v_cndmask_b32 v18, v18, 0, vcc
    v_cmp_eq_u32 vcc, 27, v16
    v_mov_b32 v19, {hx_(16.0)}
    s_and_b32 s36, s3, 3
    v_cndmask_b32 v18, v18, v19, vcc
    v_lshlrev_b32 v19, 27, v{vL}
    v_and_b32 v19, 0x80000000, v19
    v_or_b32 v18, v18, v19
    s_lshl_b32 s37, s36, 3
    v_lshl_add_u32 v19, v17, 2, s37
    v_cvt_f32_u32 v19, v19
    s_lshl_b32 s37, s36, 10
    v_add_u32 v20, s37, v{vL16}
    s_cmp_ge_u32 s3, 4
    s_cbranch_scc1 L_cg2""")
    k(f"v_mul_f32 v21, {hx_(1/1024)}, v18\nv_mul_f32 v22, v19, v21")
    for r in range(4):
        k(f"v_cos_f32 v{24+r}, v22\nv_sin_f32 v{28+r}, v22")
        if r < 3: k("v_add_f32 v22, v22, v21")
    k(f"ds_write_b128 v20, v[24:27] offset:{CT}\nds_write_b128 v20, v[28:31] offset:{CT+4096}")
    k(f"""s_lshr_b32 s37, s36, 1
    s_and_b32 s38, s36, 1
    s_lshl_b32 s39, s37, 4
    s_lshl_b32 s44, s38, 2
    s_add_u32 s39, s39, s44
    v_lshl_add_u32 v19, v17, 3, s39
    v_cvt_f32_u32 v19, v19
    v_mul_f32 v21, {hx_(1/32)}, v18
    v_mul_f32 v22, v19, v21
    s_lshl_b32 s37, s37, 10
    s_lshl_b32 s38, s38, 3
    s_add_u32 s37, s37, s38
    v_add_u32 v20, s37, v{vL16}""")
    for r in range(4):
        k(f"v_fract_f32 v23, v22\nv_add_f32 v22, v22, v21\nv_cos_f32 v{WT+r}, v23\nv_sin_f32 v{WT+4+r}, v23")
    for r in range(4): k(f"v_add_f32 v{WT+8+r}, v{WT+r}, v{WT+4+r}\nv_sub_f32 v{WT+12+r}, v{WT+r}, v{WT+4+r}")
    for r in range(4): k(f"v_cvt_pk_bf16_f32 v{WT+r}, v{WT+8+2*r}, v{WT+9+2*r}")
    k(f"ds_write_b64 v20, {vr(WT,2)} offset:{CT+8192}\nds_write_b64 v20, {vr(WT+2,2)} offset:{CT+10240}\ns_branch L_cg3\nL_cg2:")
    k(f"v_cvt_f32_u32 v21, v16\nv_mul_f32 v21, {hx_(1/32)}, v21\nv_mul_f32 v22, v19, v21")
    for r in range(4):
        k(f"v_fract_f32 v23, v22\nv_add_f32 v22, v22, v21\nv_cos_f32 v{WT+r}, v23\nv_sin_f32 v{WT+4+r}, v23")
    k(f"""s_lshl_b32 s37, s36, 6
    v_add_u32 v23, s37, v{vL}
    v_cvt_f32_u32 v22, v23
    v_mul_f32 v22, {hx_(1/256)}, v22
    v_cos_f32 v24, v22
    v_sin_f32 v25, v22""")
    for r in range(4): k(f"v_cvt_pk_f16_f32 v{28+r}, v{WT+2*r}, v{WT+2*r+1}")
    k(f"""ds_write_b128 v20, v[28:31] offset:{CT+12288}
    v_mul_f32 v24, {hx_(1/32)}, v24
    v_mul_f32 v25, {hx_(-1/32)}, v25
    v_lshlrev_b32 v23, 2, v23
    v_cvt_pk_f16_f32 v24, v24, v25
    ds_write_b32 v23, v24 offset:{T256}
    s_cmp_lg_u32 s3, 4
    s_cbranch_scc1 L_cg3
    s_cmp_eq_u32 s2, 0
    s_mov_b32 s37, 1024
    s_cmov_b32 s37, 128
    s_mov_b32 s38, 2048
    s_cmov_b32 s38, 1024
    s_cselect_b32 s39, 0, {hx_(-0.25)}
    s_cselect_b32 s48, 0xaaaa5555, -1
    s_cselect_b32 s49, 0x5555, 0
    s_mov_b32 s50, s48
    s_mov_b32 s51, 0
    v_bfe_u32 v19, v{vL}, 4, 1
    v_mul_u32_u24 v19, s37, v19
    v_mad_u32_u24 v19, v17, s38, v19
    v_add_u32 v19, s2, v19
    v_bfe_u32 v20, v{vL}, 1, 3
    v_mul_u32_u24 v19, v19, v20
    v_cvt_f32_u32 v19, v19
    v_cvt_f32_u32 v21, v20
    v_and_b32 v20, 1, v{vL}
    v_cvt_f32_u32 v20, v20
    v_mul_f32 v21, 0.125, v21
    v_mul_f32 v20, s39, v20
    v_add_f32 v20, 0.125, v20
    v_fmac_f32 v20, {hx_(1/2048)}, v19
    v_mov_b32 v19, {hx_(2**0.5/4)}
    v_cndmask_b32 v22, 0, v19, s[48:49]
    v_cndmask_b32 v19, 0, v19, s[50:51]""")
    for d in range(4):
        k(f"v_fract_f32 v23, v20\nv_add_f32 v20, v20, v21\nv_cos_f32 v{WT+2*d}, v23\nv_sin_f32 v{WT+2*d+1}, v23")
    for d in range(4):
        sc = 22 if d == 0 else 19
        k(f"v_mul_f32 v{WT+2*d}, v{sc}, v{WT+2*d}\nv_mul_f32 v{WT+2*d+1}, v{sc}, v{WT+2*d+1}\nv_cvt_pk_f16_f32 v{24+d}, v{WT+2*d}, v{WT+2*d+1}")
    k(f"ds_write_b128 v{vL16}, v[24:27] offset:{CT+16384}\nL_cg3:")
    k(f"""s_lshl_b32 s37, s36, 6
    s_add_u32 s37, s37, s41
    v_lshl_add_u32 v19, v16, 1, s37
    v_lshlrev_b32 v20, 2, v19
    v_mul_u32_u24 v21, v20, v17
    v_lshlrev_b32 v21, 2, v21
    v_add_u32 v19, 1, v19
    v_lshlrev_b32 v19, 30, v19
    v_and_b32 v19, 0x80000000, v19
    v_or_b32 v19, 0x28002800, v19
    v_mul_u32_u24 v23, 5, v20
    s_waitcnt lgkmcnt(0)
    s_barrier""")
    for q in range(4): k(f"ds_read_b128 {vr(B1P+4*q,4)}, v{vL16} offset:{CT+8192+1024*q}")
    for q in range(8): k(f"ds_read_b128 {vr(TWC+4*q,4)}, v{vL16} offset:{CT+1024*q}")
    for q in range(4): k(f"ds_read_b128 {vr(B2+4*q,4)}, v{vL16} offset:{CT+12288+1024*q}")
    k(f"ds_read_b128 {vr(RA,4)}, v{vL16} offset:{CT+16384}")
    for e in range(32):
        k(f"v_and_b32 v22, 0x3fc, v21\nds_read_b32 v{YB+e}, v22 offset:{T256}")
        if e < 31: k(f"v_add_u32 v21, v21, v{23 if e % 4 == 3 else 20}")
    mask64(48, 0xfffe0001fffe0001); mask64(50, 0xffff0000ffff0000); mask64(52, 0xfffe0001); mask64(54, 0x10000)
    k(f"""v_bfe_u32 v20, v{vL}, 2, 2
    v_and_b32 v21, 3, v{vL}
    v_lshl_add_u32 v22, v17, 3, v20
    v_bfe_u32 v23, v{vL}, 4, 1
    v_lshlrev_b32 v22, 6, v22
    v_lshl_add_u32 v22, v23, 5, v22
    v_lshl_add_u32 v{vATW}, v21, 3, v22
    s_lshl_b32 s37, s3, 12
    v_add_u32 v{vATR}, s37, v{vATW}
    v_sub_u32 v22, 32, v16
    v_min_u32 v22, v22, v16
    v_and_b32 v22, 15, v22
    v_lshlrev_b32 v22, 4, v22
    v_lshl_add_u32 v22, v17, 8, v22
    s_mul_i32 s37, s3, {2*RS}
    s_add_u32 s37, s37, {PL0}
    v_add_u32 v22, s37, v22
    v_add_u32 v24, {RS+NEG}, v22
    v_cndmask_b32 v{vAP}, v22, v24, s[50:51]
    v_add_u32 v24, {RS}, v22
    v_add_u32 v25, {NEG}, v22
    v_cndmask_b32 v{vAN}, v25, v24, s[48:49]
    v_cndmask_b32 v{vF1}, v{vAP}, v{vAN}, s[52:53]
    s_add_u32 s38, s37, {XLOC-14}
    v_mov_b32 v24, s38
    v_cndmask_b32 v{vF1}, v{vF1}, v24, s[54:55]
    v_sub_u32 v24, 33, v16
    v_and_b32 v24, 15, v24
    s_add_u32 s38, s37, {RS+NEG}
    v_lshl_add_u32 v24, v24, 4, s38
    v_cndmask_b32 v{vF2}, v{vAN}, v24, s[52:53]
    s_cmp_eq_u32 s2, 0
    s_cselect_b32 s38, {-2*RS}, 0
    v_mul_u32_u24 v24, {8*RS}, v23
    v_mov_b32 v25, s38""")
    mask64(48, 0x0000ffff00000000); mask64(50, 0xffff000000000000)
    k(f"""v_cndmask_b32 v24, v24, v25, s[48:49]
    v_cndmask_b32 v{WO}, v24, 0, s[50:51]
    v_mul_u32_u24 v24, {RS}, v20
    v_add_u32 v24, v24, v{WO}
    v_and_b32 v25, 1, v{vL}
    v_mul_u32_u24 v25, {NEG}, v25
    v_add_u32 v21, 1, v21
    v_lshrrev_b32 v21, 1, v21
    s_lshl_b32 s37, s3, 1
    v_add_u32 v21, s37, v21
    v_and_b32 v21, 15, v21
    v_lshl_add_u32 v21, v21, 4, v25
    s_mov_b32 s37, {PL0}
    v_add3_u32 v{vAB}, v21, v24, s37
    v_lshrrev_b32 v21, 4, v{vL}
    v_and_b32 v24, 15, v{vL}
    v_lshlrev_b32 v24, 4, v24
    v_lshl_add_u32 v{vZO}, v21, 12, v24
    v_mov_b32 v{vMSK}, 0xfffcfffc
    v_mov_b32 v21, s30
    v_mov_b32 v24, s31
    v_cmp_eq_u32 vcc, 0, v17
    v_and_b32 v25, 7, v{vL}
    v_lshlrev_b32 v26, 5, v25
    v_cndmask_b32 v21, v24, v21, vcc
    v_sub_u32 v{vRK}, 0xffff, v21
    v_and_b32 v24, 15, v21
    v_lshrrev_b32 v21, 4, v21
    v_lshlrev_b32 v21, 3, v21
    v_lshl_add_u32 v{vSO}, v24, 10, v21
    v_cmp_eq_u32 vcc, 7, v25
    v_add_u32 v26, {PL0+46}, v26
    v_mov_b32 v24, {PL0+XLOC}
    v_mov_b32 v27, {RS}
    v_cndmask_b32 v26, v26, v24, vcc
    v_cndmask_b32 v27, v27, 0, vcc
    v_add_u32 v30, v26, v{WO}
    v_add_u32 v31, v30, v27
    s_lshl_b32 s37, s3, 3
    v_lshl_add_u32 v29, v17, 2, s37""")
    vEP, vEM, vCX = 30, 31, 29
    SA, SB_, QA, QB, DA, DB, W1, W2 = 16, 17, 18, 20, 21, 22, 23, 24
    k(f"s_waitcnt lgkmcnt(0)\nv_mov_b32_dpp v{YB}, v19 quad_perm:[0,1,2,3] row_mask:0x3 bank_mask:0xf")
    for r in (SA, SB_, QA, QB, DA, DB, W1): k(f"v_mov_b32 v{r}, 0")
    k("s_mov_b32 s37, 0x3f803f80")
    k(f"s_waitcnt vmcnt({NX})")
    stamp(1)
    for i in range(8): k(f"ds_read_b64_tr_b16 {vr(XA+2*i,2)}, v{vATR} offset:{(i//4)*2048 + ((i//2)%2)*1024 + (i%2)*256}")
    k("s_barrier")
    for i in range(4): k(f"ds_read_b64_tr_b16 {vr(WO+2*i,2)}, v{vATW} offset:{WRL + (i//2)*1024 + (i%2)*256}")
    nonce(vEp)
    mf = []
    for (acc, X, Bm) in ((PA, XA, B1P), (MA, XA, B1M), (PB, XB, B1P), (MB, XB, B1M)):
        for u in range(2): mf.append(f"v_mfma_f32_32x32x16_bf16 {vr(acc,16)}, {vr(X+4*u,4)}, {vr(Bm+4*u,4)}, {vr(acc,16) if u else 0}")
    dots = []
    for X, s_, q_ in ((XA, SA, QA), (XB, SB_, QB)):
        for i in range(8): dots += [f"v_dot2c_f32_bf16 v{s_}, s37, v{X+i}", f"v_dot2c_f32_bf16 v{q_}, v{X+i}, v{X+i}"]
    d2 = []
    for i in range(8): d2 += [f"v_dot2c_f32_bf16 v{DA}, v{WO+i}, v{XA+i}", f"v_dot2c_f32_bf16 v{DB}, v{WO+i}, v{XB+i}", f"v_dot2c_f32_bf16 v{W1}, s37, v{WO+i}"]
    k("s_waitcnt lgkmcnt(8)")
    for i in range(16):
        if i % 8 == 0: k(mf.pop(0))
        k(dots[i])
    k("s_waitcnt lgkmcnt(4)")
    for i in range(16, 32):
        if i % 8 == 0: k(mf.pop(0))
        k(dots[i])
    k("s_waitcnt lgkmcnt(0)")
    for i in range(24):
        if i % 6 == 0: k(mf.pop(0))
        k(d2[i])
    k(f"""v_permlane32_swap_b32 v{SA}, v{SB_}
    v_permlane32_swap_b32 v{QA}, v{QB}
    v_mov_b32 v{W2}, v{W1}
    v_permlane32_swap_b32 v{DA}, v{DB}
    v_add_f32 v{SA}, v{SA}, v{SB_}
    v_permlane32_swap_b32 v{W1}, v{W2}
    v_add_f32 v{QA}, v{QA}, v{QB}
    v_add_f32 v{DA}, v{DA}, v{DB}
    v_add_f32 v{W1}, v{W1}, v{W2}
    v_permlane16_swap_b32 v{SA}, v{QA}
    v_permlane16_swap_b32 v{DA}, v{W1}
    v_add_f32 v{SA}, v{SA}, v{QA}
    v_add_f32 v{DA}, v{DA}, v{W1}
    v_add_f32_dpp v{QA}, v{SA}, v{SA} row_ror:8 row_mask:0xf bank_mask:0x3
    v_add_f32_dpp v{QA}, v{DA}, v{DA} row_ror:8 row_mask:0xf bank_mask:0xc
    v_add_f32_dpp v{QA}, v{QA}, v{QA} row_half_mirror {FULL}
    v_add_f32_dpp v{QA}, v{QA}, v{QA} quad_perm:[2,3,0,1] {FULL}
    v_add_f32_dpp v{QA}, v{QA}, v{QA} quad_perm:[1,0,3,2] {FULL}
    v_mov_b32 v{QB}, v{QA}
    v_permlane16_swap_b32 v{QA}, v{QB}
    v_mul_f32 v{SA}, {hx_(1/1024)}, v{QA}
    v_mul_f32 v{SB_}, {hx_(1/1024)}, v{QB}
    v_mov_b32_dpp v{DA}, v{QA} row_ror:8 {FULL}
    v_fma_f32 v{SB_}, -v{SA}, v{SA}, v{SB_}
    v_mov_b32_dpp v{W1}, v{QB} row_ror:8 {FULL}
    v_max_f32 v{SB_}, 0, v{SB_}
    v_cvt_pk_bf16_f32 v{SB_}, v{SB_}, v{SB_}
    v_and_b32 v{SB_}, 0xffff0000, v{SB_}
    v_add_f32 v{SB_}, 0x3727c5ac, v{SB_}
    v_cvt_pk_bf16_f32 v{SB_}, v{SB_}, v{SB_}
    v_and_b32 v{SB_}, 0xffff0000, v{SB_}
    v_sqrt_f32 v{SB_}, v{SB_}
    v_mov_b32 v27, s24
    v_cvt_pk_bf16_f32 v26, v{SA}, v{SB_}
    v_and_b32 v{SB_}, 0xffff0000, v26
    v_rcp_f32 v{SB_}, v{SB_}
    v_lshlrev_b32 v{SA}, 16, v26
    v_fma_f32 v{DA}, -v{SA}, v{W1}, v{DA}
    v_mul_f32 v{DA}, v{DA}, v{SB_}
    v_mul_f32 v{SA}, v{SA}, v{SB_}
    v_cvt_pk_bf16_f32 v{DA}, v{DA}, v{DA}
    v_readlane_b32 s56, v{SB_}, 0
    v_ashrrev_i32 v{W1}, 31, v{DA}
    v_or_b32 v{W1}, 0x80000000, v{W1}
    v_xor_b32 v{DA}, v{DA}, v{W1}
    v_and_b32 v{DA}, 0xffff0000, v{DA}
    v_or_b32 v{DA}, v{DA}, v{vRK}
    s_mov_b32 s37, {STATS}""")
    setexec(0x100000001)
    k(f"ds_write_b32 v{vCX}, v{DA} offset:{CANDX}\nbuffer_store_dwordx2 v[26:27], v{vSO}, {SW}, s37 offen sc1")
    setexec(-1)
    k(f"""v_readlane_b32 s57, v{SB_}, 32
    v_readlane_b32 s58, v{SA}, 0
    v_readlane_b32 s59, v{SA}, 32
    v_and_b32 v16, 15, v{vL}
    v_lshlrev_b32 v16, 2, v16
    s_waitcnt lgkmcnt(0)
    s_barrier
    s_cmp_lg_u32 s3, 7
    s_cbranch_scc1 L_nocand
    ds_read_b32 v20, v16 offset:{CANDX}
    v_mov_b32 v22, s24
    s_lshl_b32 s37, s2, 4
    s_add_u32 s37, s37, {CAND}
    s_waitcnt lgkmcnt(0)
    v_min_u32_dpp v21, v20, v20 row_ror:8 {FULL}
    v_max_u32_dpp v20, v20, v20 row_ror:8 {FULL}""")
    for s in (4, 2, 1): top2_step(20, 21, 23, f'row_ror:{s} {FULL}')
    setexec(1)
    k(f"buffer_store_dwordx4 v[20:23], off, {SW}, s37 sc1")
    setexec(-1)
    k("L_nocand:")
    stamp(2)
    def wd_dma():
        L = k.lab('Lwd')
        k(f"""s_cmp_ge_u32 s2, 112
        s_cbranch_scc1 {L}
        s_and_b32 s37, s3, 1
        s_lshl_b32 s37, s37, 2
        s_lshr_b32 s38, s3, 1
        s_add_u32 s37, s37, s38
        s_mul_i32 s37, s37, {4*WDS}
        s_add_u32 m0, s37, {WDL}
        s_lshl_b32 s37, s2, 3
        s_add_u32 s37, s37, s3
        s_lshl_b32 s37, s37, 13""")
        for i in range(4):
            k(f"buffer_load_dwordx4 v{vL16}, {S4}, s37 offen lds\nbuffer_load_dwordx4 v{vL16}, {S4}, s37 offen offset:1024 lds")
            if i < 3: k(f"s_add_u32 m0, m0, {WDS}\ns_add_u32 s37, s37, 2048")
        k(f"{L}:")
    if wd_pos == 0: wd_dma()
    k("""s_and_b32 s37, s24, 0x3333
    s_and_b32 s38, s24, 0xcccc
    s_lshl_b32 s38, s38, 14
    s_or_b32 s37, s37, s38
    s_and_b32 s25, s37, 0x30003
    s_lshr_b32 s38, s37, 4
    s_and_b32 s26, s38, 0x30003
    s_lshr_b32 s38, s37, 8
    s_and_b32 s27, s38, 0x30003
    s_lshr_b32 s38, s37, 12
    s_and_b32 s28, s38, 0x30003
    s_mov_b32 s60, s57
    s_mov_b32 s61, s59
    s_or_b32 s62, s2, s3
    s_cmp_eq_u32 s62, 0
    s_cselect_b32 s57, 0, s57
    s_cselect_b32 s59, 0, s59
    L_job:""")
    k(f"""v_mul_f32 v18, s58, v{vK0}
    v_mul_f32 v19, s59, v{vK0}
    v_add_f32 v16, v18, v19
    v_sub_f32 v17, v18, v19""")
    for g in range(8):
        t = WT + 8 * (g % 2); Wr, Wi, T1, T2 = vr(t, 2), vr(t + 2, 2), vr(t + 4, 2), vr(t + 6, 2)
        c, s = vr(TWC + 2 * g, 2), vr(TWS + 2 * g, 2)
        u, hf = g // 2, g % 2
        k(f"""v_pk_fma_f32 {Wr}, {vr(PA+2*g,2)}, s[56:57], v[16:17] op_sel:[0,0,0] op_sel_hi:[1,0,0]
        v_pk_fma_f32 {Wi}, {vr(MA+2*g,2)}, s[56:57], v[16:17] op_sel:[0,0,1] op_sel_hi:[1,0,1]
        v_pk_fma_f32 {Wr}, {vr(MB+2*g,2)}, s[56:57], {Wr} op_sel:[0,1,0] op_sel_hi:[1,1,1]
        v_pk_fma_f32 {Wi}, {vr(PB+2*g,2)}, s[56:57], {Wi} op_sel:[0,1,0] op_sel_hi:[1,1,1] neg_lo:[1,0,0] neg_hi:[1,0,0]
        v_pk_mul_f32 {T2}, {Wr}, {s}
        v_pk_mul_f32 {T1}, {Wi}, {s}
        v_pk_fma_f32 {T2}, {Wi}, {c}, {T2} neg_lo:[0,0,1] neg_hi:[0,0,1]
        v_pk_fma_f32 {T1}, {Wr}, {c}, {T1}
        v_cvt_pk_f16_f32 v{XA+4*u+2+hf}, v{t+6}, v{t+7}
        v_cvt_pk_f16_f32 v{XA+4*u+hf}, v{t+4}, v{t+5}""")
        if hf == 0 and u > 0: k(f"v_mfma_f32_32x32x16_f16 {vr(D2,16)}, {vr(XA+4*(u-1),4)}, {vr(B2+4*(u-1),4)}, {vr(D2,16) if u > 1 else 0}")
    k(f"v_mfma_f32_32x32x16_f16 {vr(D2,16)}, {vr(XA+12,4)}, {vr(B2+12,4)}, {vr(D2,16)}")
    for i in range(8): k(f"v_cvt_pk_f16_f32 v{WO+i}, v{D2+2*i}, v{D2+2*i+1}")
    k(f"""ds_write_b128 v{vAP}, {vr(WO,4)}
    ds_write_b128 v{vAN}, {vr(WO+4,4)}
    ds_write_b16_d16_hi v{vF1}, v{WO+3} offset:14
    ds_write_b16_d16_hi v{vF2}, v{WO+7} offset:14
    s_cmp_lg_u32 s62, 0
    s_cbranch_scc1 L_jobx
    s_mov_b32 s62, 1
    s_mov_b32 s56, 0
    s_mov_b32 s58, 0
    s_mov_b32 s57, s60
    s_mov_b32 s59, s61""")
    for r in (vAP, vAN, vF1, vF2): k(f"v_subrev_u32 v{r}, {2*RS}, v{r}")
    k(f"""s_branch L_job
    L_jobx:
    s_lshl_b32 s37, s2, 14
    s_lshl_b32 s38, s3, 8
    s_add_u32 s37, s37, s38
    s_add_u32 s37, s37, {ZB}
    s_waitcnt lgkmcnt(0)
    s_barrier""")
    stamp(3)
    for j in range(4):
        for v in range(2): k(f"ds_read_b64_tr_b16 {vr(XA+4*j+2*v,2)}, v{vAB} offset:{v*4*RS + (j//2)*256 + (j%2)*8}")
    for j in range(4):
        k(f"s_waitcnt lgkmcnt({6-2*j})\nv_mfma_f32_16x16x32_f16 {vr(WT+4*j,4)}, {vr(RA,4)}, {vr(XA+4*j,4)}, 0")
    for kk in range(2):
        for d in range(4):
            a = WT + 8 * (d % 2) + 2 * kk + d // 2
            k(f"v_cvt_pk_f16_f32 v{WO+4*kk+d}, v{a}, v{a+4}")
        for d in range(4): k(f"v_add_u32 v{WO+4*kk+d}, 0x20002, v{WO+4*kk+d}")
        for d in range(4): k(f"v_and_or_b32 v{WO+4*kk+d}, v{WO+4*kk+d}, v{vMSK}, s{25+d}")
        k(f"buffer_store_dwordx4 {vr(WO+4*kk,4)}, v{vZO}, {SW}, s37 offen offset:{2048*kk} sc1")
    k("s_cmp_lg_u32 s3, 6\ns_cbranch_scc1 L_noext")
    for d in range(4): k(f"ds_read_u16 v{PA+2*d}, v{vEP} offset:{2*RS*d}\nds_read_u16 v{PA+2*d+1}, v{vEM} offset:{2*RS*d}")
    k(f"""v_lshrrev_b32 v16, 4, v{vL}
    v_and_b32 v17, 15, v{vL}
    v_lshlrev_b32 v16, 14, v16
    v_lshl_add_u32 v16, v17, 10, v16
    s_lshl_b32 s37, s2, 3
    s_add_u32 s37, s37, {EXT}
    s_add_u32 s38, s37, 8192
    v_mov_b32 v{PA+17}, s24
    v_mov_b32 v{PA+19}, s24
    s_waitcnt lgkmcnt(0)""")
    for d in range(4): k(f"v_lshl_or_b32 v{PA+8+d}, v{PA+2*d+1}, 16, v{PA+2*d}")
    k(f"""v_mfma_f32_16x16x32_f16 {vr(PA+12,4)}, {vr(RA,4)}, {vr(PA+8,4)}, 0
    v_cvt_pk_f16_f32 v{PA+16}, v{PA+12}, v{PA+13}
    v_cvt_pk_f16_f32 v{PA+18}, v{PA+14}, v{PA+15}""")
    setexec(0x00ff00ff00ff00ff)
    k(f"buffer_store_dwordx2 {vr(PA+16,2)}, v16, {SW}, s37 offen sc1\nbuffer_store_dwordx2 {vr(PA+18,2)}, v16, {SW}, s38 offen sc1")
    setexec(-1)
    k("L_noext:")
    stamp(4)
    if wd_pos == 1: wd_dma()

    RES, ZA, ST, CN, YA, XFR, ACC, WB = 64, 96, 112, 120, 132, 176, 208, 224
    vGA, vGB0, vGB1, vIW, vYR, vSW_, vSR, vNX, vBIG, vXA = 4, 5, 6, 7, 8, 9, 10, 11, 12, 13
    if not xres_early: xres_load()
    for q in range(4):
        k(f"""v_bfe_u32 v16, v{vOF+q}, 11, 4
        v_lshrrev_b32 v17, 15, v{vOF+q}
        v_lshlrev_b32 v17, 3, v17
        v_lshl_add_u32 v{20+q}, v16, 10, v17""")
    k(f"s_mov_b32 s44, {STATS}\ns_mov_b32 s45, {CAND}")
    def st_issue():
        for q in range(4): k(f"buffer_load_dwordx2 {vr(ST+2*q,2)}, v{20+q}, {SW}, s44 offen sc1")
    st_issue()
    k(f"""v_lshrrev_b32 v16, 4, v0
    v_and_b32 v17, 15, v0
    v_lshlrev_b32 v17, 4, v17
    v_lshl_add_u32 v{vGA}, v16, 14, v17
    v_sub_u32 v18, 96, v16
    v_lshl_add_u32 v{vGB1}, v18, 14, v17
    v_add_u32 v18, 32, v18
    v_cmp_eq_u32 vcc, 0, v16
    v_and_b32 v19, 1, v16
    v_lshlrev_b32 v19, 6, v19
    v_cndmask_b32 v18, v18, 64, vcc
    v_lshl_add_u32 v{vGB0}, v18, 14, v17
    v_xor_b32 v17, v17, v19
    v_lshl_add_u32 v{vIW}, v16, 8, v17
    s_lshl_b32 s48, s40, 11
    s_lshl_b32 s49, s42, 8
    s_add_u32 s48, s48, s49
    s_add_u32 s48, s48, {ZB}
    s_add_u32 s49, s48, {32*16384}
    s_cmp_eq_u32 s41, 0
    s_mov_b32 s50, 0xbc00bc00
    s_cmov_b32 s50, 0x3c003c00
    s_lshr_b32 s51, s3, 2
    s_and_b32 s52, s3, 3
    v_and_b32 v16, 1, v{vL}
    v_bfe_u32 v17, v{vL}, 1, 1
    v_bfe_u32 v18, v{vL}, 4, 1
    v_lshl_add_u32 v16, v16, 3, v17
    v_lshl_add_u32 v16, v18, 1, v16
    s_lshl_b32 s37, s51, 2
    v_add_lshl_u32 v16, v16, s37, 4
    v_bfe_u32 v17, v{vL}, 2, 1
    v_lshl_add_u32 v16, v17, 3, v16
    v_bfe_u32 v17, v{vL}, 3, 1
    v_lshlrev_b32 v18, 6, v17
    v_xor_b32 v16, v16, v18
    v_lshrrev_b32 v18, 5, v{vL}
    v_lshl_add_u32 v17, v18, 2, v17
    v_lshl_add_u32 v{vYR}, v17, 8, v16
    v_lshlrev_b32 v{vXA}, 4, v18
    v_lshl_add_u32 v16, v18, 1, s51
    v_lshlrev_b32 v16, 1, v16
    v_and_b32 v17, 7, v{vL}
    v_xor_b32 v16, v16, v17
    v_and_b32 v18, 31, v{vL}
    s_lshl_b32 s37, s52, 5
    v_add_lshl_u32 v18, v18, s37, 7
    v_lshl_add_u32 v{vSW_}, v16, 4, v18
    v_lshrrev_b32 v16, 3, v0
    v_and_b32 v18, 7, v16
    v_xor_b32 v19, v17, v18
    v_lshlrev_b32 v19, 4, v19
    v_lshl_add_u32 v{vSR}, v16, 7, v19
    v_add_u32 v19, 1, v17
    v_xor_b32 v19, v19, v18
    v_lshlrev_b32 v19, 4, v19
    v_lshl_add_u32 v19, v16, 7, v19
    v_add_u32 v19, {STG}, v19
    v_cmp_eq_u32 vcc, 7, v17
    v_lshlrev_b32 v16, 1, v16
    v_add_u32 v16, {XO}, v16
    v_add_u32 v18, 128, v16
    v_add_u32 v17, 8192, v19
    v_cndmask_b32 v{vNX}, v19, v16, vcc
    v_cndmask_b32 v14, v17, v18, vcc
    v_mov_b32 v{vBIG}, 0x40000000""")
    vNX1 = 14
    poll(st_issue, lambda: check_word([ST + 1, ST + 3, ST + 5, ST + 7], 16), 's63', issued=True, vm=0)
    stamp(5)
    def z_issue():
        k(f"""buffer_load_dwordx4 {vr(ZA,4)}, v{vGA}, {SW}, s48 offen sc1
        buffer_load_dwordx4 {vr(ZA+4,4)}, v{vGB0}, {SW}, s48 offen sc1
        buffer_load_dwordx4 {vr(ZA+8,4)}, v{vGA}, {SW}, s49 offen sc1
        buffer_load_dwordx4 {vr(ZA+12,4)}, v{vGB1}, {SW}, s48 offen sc1""")
    def z_check():
        for i in range(16): k(f"v_xor_b32 v{ZA+i}, s{25+i%4}, v{ZA+i}")
        or_tree(range(ZA, ZA + 16), 16); k("v_and_b32 v16, 0x30003, v16\nv_cmp_ne_u32 vcc, 0, v16")
    for q in range(4):
        k(f"""v_and_b32 v16, 0xffff0000, v{ST+2*q}
        v_rcp_f32 v16, v16
        v_lshlrev_b32 v17, 16, v{ST+2*q}
        v_mul_f32 v17, v17, v16
        v_add_f32 v16, 1.0, v16""")
        for d in range(4):
            r = RES + 8 * q + 2 * d
            k(f"""v_lshlrev_b32 v{r}, 16, v{XR+4*q+d}
            v_and_b32 v{r+1}, 0xffff0000, v{XR+4*q+d}
            v_pk_fma_f32 {vr(r,2)}, {vr(r,2)}, v[16:17], v[16:17] op_sel:[0,0,1] op_sel_hi:[1,0,1] neg_lo:[0,0,1] neg_hi:[0,0,1]""")
    k("s_cmp_lg_u32 s3, 7\ns_cbranch_scc1 L_y1")
    cand_top2(CN, vL16, 's63')
    k(f"v_mov_b32 v16, s46\nv_mov_b32 v17, s47\nv_mov_b32 v18, 0\nds_write_b64 v18, v[16:17] offset:{TOPL}\nL_y1:")
    k(f"""s_cmp_lg_u32 s3, 6
    s_cbranch_scc1 L_y2
    v_lshlrev_b32 v18, 3, v{vL}
    v_sub_u32 v19, 1024, v18
    v_mov_b32 v20, 512
    v_cmp_eq_u32 vcc, 0, v{vL}
    s_lshl_b32 s37, s40, 13
    s_lshl_b32 s38, s42, 10
    s_add_u32 s37, s37, s38
    s_add_u32 s37, s37, {EXT}
    v_cndmask_b32 v19, v19, v20, vcc""")
    poll(lambda: k(f"buffer_load_dwordx2 {vr(CN,2)}, v18, {SW}, s37 offen sc1\nbuffer_load_dwordx2 {vr(CN+2,2)}, v19, {SW}, s37 offen sc1"),
         lambda: check_word([CN + 1, CN + 3], 16), 's63')
    k(f"""s_cmp_eq_u32 s41, 0
    s_mov_b32 s38, 0x07060100
    s_cmov_b32 s38, 0x05040100
    v_lshrrev_b32 v17, 16, v{CN}
    v_perm_b32 v16, v{CN+2}, v{CN}, s38""")
    setexec(1)
    k(f"v_mov_b32 v{CN}, v16\nv_mov_b32 v{CN+2}, v17")
    setexec(-1)
    k(f"""v_lshrrev_b32 v18, 1, v18
    v_pk_fma_f16 v{CN}, v{CN+2}, s50, v{CN} neg_hi:[0,1,0]
    ds_write_b32 v18, v{CN} offset:{XF}
    L_y2:""")
    if zsent: k("s_barrier")
    stamp(6)
    poll(z_issue, z_check, 's63')
    stamp(7)
    k(f"s_cmp_lg_u32 s3, 0\ns_cbranch_scc1 L_y3\ns_cmp_eq_u32 s41, 0\ns_cselect_b64 vcc, 0, -1")
    setexec(0xffff)
    k(f"""v_cndmask_b32 v16, v{ZA+4}, v{ZA+6}, vcc
    v_cndmask_b32 v17, v{ZA+5}, v{ZA+7}, vcc
    v_mov_b32 v{ZA+4}, v{ZA+2}
    v_mov_b32 v{ZA+5}, v{ZA+3}
    v_mov_b32 v{ZA+2}, v16
    v_mov_b32 v{ZA+3}, v17
    v_mov_b32 v{ZA+6}, 0
    v_mov_b32 v{ZA+7}, 0""")
    setexec(-1)
    k("L_y3:")
    for a in range(2):
        for d in range(4):
            r = ZA + 8 * a + d
            k(f"v_pk_fma_f16 v{r}, v{r+4}, s50, v{r}" + (" neg_lo:[0,1,0] neg_hi:[0,1,0]" if d >= 2 else ""))
        k(f"ds_write_b128 v{vIW}, {vr(ZA+8*a,4)} offset:{YIMG+8192*a}")
    k("v_mov_b32 v18, 0\nv_mov_b32 v19, 0\ns_waitcnt lgkmcnt(0)\ns_barrier")
    k(f"ds_read_b64 v[16:17], v18 offset:{TOPL}")
    def ymf(u): k(f"v_mfma_f32_32x32x16_f16 {vr(ACC,16)}, {vr(YA+4*u,4)}, {vr(YB+4*u,4)}, {vr(ACC,16) if u else 0}")
    def ytr(u):
        for v in range(2): k(f"ds_read_b64_tr_b16 {vr(YA+4*u+2*v,2)}, v{vYR} offset:{YIMG+u*2048+v*512}")
    def selprep():
        k(f"""v_readfirstlane_b32 s46, v16
        v_readfirstlane_b32 s47, v17
        s_and_b32 s46, s46, 0xffff
        s_and_b32 s47, s47, 0xffff
        s_sub_u32 s46, 0xffff, s46
        s_sub_u32 s47, 0xffff, s47""")
        for q in range(4):
            k(f"""v_lshrrev_b32 v16, 11, v{vOF+q}
            v_cmp_eq_u32 s[{52+2*q}:{53+2*q}], s46, v16
            v_cmp_eq_u32 vcc, s47, v16
            s_or_b64 s[{52+2*q}:{53+2*q}], s[{52+2*q}:{53+2*q}], vcc
            v_cndmask_b32 v{20+q}, v{vOF+q}, v{vBIG}, s[{52+2*q}:{53+2*q}]""")
    def stage_out(O):
        pos = {O[j][q]: ACC + 4 * q + j for j in range(4) for q in range(4)}
        for i in range(8): k(f"v_cvt_pk_f16_f32 v{ST+i}, v{pos[2*i]}, v{pos[2*i+1]}")
        k(f"v_xor_b32 v16, 16, v{vSW_}\nds_write_b128 v{vSW_}, {vr(ST,4)} offset:{STG}\nds_write_b128 v16, {vr(ST+4,4)} offset:{STG}")
    k("s_cmp_lg_u32 s51, 0\ns_cbranch_scc1 L_y4")
    for u in range(7): ytr(u)
    k("s_waitcnt lgkmcnt(12)"); ymf(0); ytr(7)
    for u in range(1, 8):
        k(f"s_waitcnt lgkmcnt({14-2*u})"); ymf(u)
        if u == 3: selprep()
    stage_out(OP)
    k("s_branch L_y5\nL_y4:")
    for u in range(4): ytr(u); k(f"ds_read_b128 {vr(XFR+4*u,4)}, v{vXA} offset:{XF+32*u}")
    for u in range(8):
        k(f"s_waitcnt lgkmcnt({min(10, 22-3*u)})"); ymf(u)
        if u < 4: ytr(u + 4); k(f"ds_read_b128 {vr(XFR+16+4*u,4)}, v{vXA} offset:{XF+128+32*u}")
        if u >= 1:
            for d in range(4): k(f"v_dot2c_f32_f16 v{18+d%2}, v{YB+4*(u-1)+d}, v{XFR+4*(u-1)+d}")
        if u == 0: selprep()
    k("s_waitcnt lgkmcnt(0)")
    for d in range(4): k(f"v_dot2c_f32_f16 v{18+d%2}, v{YB+28+d}, v{XFR+28+d}")
    k(f"""v_and_b32 v17, 31, v{vL}
    s_and_b32 s37, s3, 3
    s_lshl_b32 s37, s37, 5
    v_add_lshl_u32 v17, v17, s37, 1
    v_add_f32 v18, v18, v19
    v_mov_b32 v19, v18
    v_permlane32_swap_b32 v18, v19
    v_add_f32 v18, v18, v19
    v_cvt_f16_f32 v18, v18
    ds_write_b16 v17, v18 offset:{XO}""")
    stage_out(OM)
    k("L_y5:\ns_mov_b32 s37, 0x42800000\ns_waitcnt lgkmcnt(0)\ns_barrier")
    stamp(8)
    k(f"""ds_read_b128 {vr(ZA,4)}, v{vSR} offset:{STG}
    ds_read_u16 v{ZA+4}, v{vNX}
    ds_read_b128 {vr(ZA+8,4)}, v{vSR} offset:{STG+8192}
    ds_read_u16 v{ZA+12}, v{vNX1}""")
    k(f"""v_bfe_u32 v16, v{vL}, 2, 4
    v_mul_u32_u24 v16, {WDS}, v16
    v_and_b32 v17, 3, v{vL}
    s_lshl_b32 s38, s3, 8
    s_add_u32 s38, s38, {WDL}
    v_lshl_add_u32 v17, v17, 3, s38
    v_add_u32 v15, v16, v17""")
    sel_blocks = []
    for q in range(4):
        a, mir = q // 2, q % 2
        if mir == 0: k(f"s_waitcnt lgkmcnt({3-2*a})")
        else: k(f"s_waitcnt lgkmcnt({2-2*a})")
        for i in range(8):
            e = 8 - i if mir else i
            k(f"v_fma_mix_f32 v{RES+8*q+i}, v{ZA+8*a+e//2}, s37, v{RES+8*q+i} op_sel:[{e%2},0,0] op_sel_hi:[1,0,0]")
        for d in range(4): k(f"v_cvt_pk_bf16_f32 v{YA+4*q+d}, v{RES+8*q+2*d}, v{RES+8*q+2*d+1}")
        k(f"buffer_store_dwordx4 {vr(YA+4*q,4)}, v{20+q}, {SO}, 0 offen")
    for q in range(4):
        k(f"s_cmp_lg_u64 s[{52+2*q}:{53+2*q}], 0\ns_cbranch_scc1 L_sel{q}\nL_selx{q}:")
    stamp(9)
    k(f"""s_cmp_ge_u32 s2, 112
    s_cbranch_scc1 L_fin
    s_mul_i32 s37, s2, 4682
    s_lshr_b32 s37, s37, 16
    s_mul_i32 s38, s37, 14
    s_sub_u32 s38, s2, s38
    s_mul_i32 s37, s37, {16*7168}
    s_lshl_b32 s38, s38, 9
    s_add_u32 s37, s37, s38
    s_add_u32 s37, s37, {AB}
    v_lshrrev_b32 v16, 5, v0
    v_and_b32 v17, 31, v0
    v_mul_u32_u24 v16, 7168, v16
    v_lshl_add_u32 v4, v17, 4, v16""")
    a_issue = lambda: k(f"buffer_load_dwordx4 v[24:27], v4, {SW}, s37 offen sc1")
    a_issue()
    for T in range(8):
        for v in range(2): k(f"ds_read_b64_tr_b16 {vr(WB+4*T+2*v,2)}, v15 offset:{v*16*WDS + 32*T}")
    k(f"""v_lshlrev_b32 v5, 3, v0
    v_lshlrev_b32 v6, 3, v{vL}
    v_lshlrev_b32 v7, 1, v0
    v_and_b32 v16, 1, v{vL}
    v_and_b32 v17, 48, v{vL}
    v_lshl_add_u32 v16, v16, 6, v17
    s_lshl_b32 s38, s3, 7
    v_add_u32 v8, s38, v16
    v_mov_b32 v9, 0xffffff00
    s_lshl_b32 s38, s2, 13
    s_lshl_b32 s39, s3, 10
    s_add_u32 s38, s38, s39
    s_add_u32 s38, s38, {BB}""")
    poll(a_issue, lambda: check_f32([24, 25, 26, 27], 16), 's63', issued=True, vm=0)
    stamp(10)
    k(f"""v_permlane32_swap_b32 v24, v25
    v_permlane32_swap_b32 v26, v27
    v_add_f32 v24, v24, v25
    v_add_f32 v25, v26, v27
    ds_write_b64 v5, v[24:25] offset:{RED}
    s_waitcnt lgkmcnt(0)
    s_barrier""")
    for i in range(8): k(f"ds_read_b64 {vr(32+2*i,2)}, v6 offset:{RED+512*i}")
    for i in range(4): k(f"s_waitcnt lgkmcnt({6-2*i})\nv_pk_add_f32 {vr(32+4*i,2)}, {vr(32+4*i,2)}, {vr(34+4*i,2)}")
    k(f"""v_pk_add_f32 v[32:33], v[32:33], v[36:37]
    v_pk_add_f32 v[40:41], v[40:41], v[44:45]
    v_pk_add_f32 v[32:33], v[32:33], v[40:41]
    v_cvt_pk_bf16_f32 v33, v32, v33
    v_lshlrev_b32 v32, 16, v33
    v_mul_f32 v34, 0xbfb8aa3b, v32
    v_exp_f32 v34, v34
    v_and_b32 v33, 0xffff0000, v33
    v_add_f32 v34, 1.0, v34
    v_rcp_f32 v34, v34
    v_mul_f32 v32, v32, v34
    v_cvt_pk_bf16_f32 v32, v32, v32
    v_and_b32 v32, 0xffff0000, v32
    v_mul_f32 v32, v32, v33
    v_cvt_pk_bf16_f32 v32, v32, v32
    ds_write_b16 v7, v32 offset:{HB}
    ds_read_b128 v[36:39], v8 offset:{HB}
    s_waitcnt lgkmcnt(0)""")
    for T in range(8): k(f"v_mfma_f32_16x16x32_bf16 {vr(64+4*T,4)}, v[36:39], {vr(WB+4*T,4)}, 0")
    for i in range(4): rowsel(40 + i, [64 + 8 * mg + 4 * (i // 2) + i % 2 for mg in range(4)])
    for i in range(4): k(f"v_and_or_b32 v{40+i}, v{40+i}, v9, s29")
    k(f"buffer_store_dwordx4 v[40:43], v{vL16}, {SW}, s38 offen sc1")
    stamp(11)
    k("s_branch L_fin")
    for q in range(4):
        k(f"""L_sel{q}:
        s_mov_b64 exec, s[{52+2*q}:{53+2*q}]
        v_lshrrev_b32 v16, 11, v{vOF+q}
        v_and_b32 v17, 2047, v{vOF+q}
        v_cmp_eq_u32 vcc, s47, v16
        v_lshlrev_b32 v17, 1, v17
        v_add_u32 v16, 4096, v17
        v_mov_b32 v18, 0xffffff00
        v_cndmask_b32 v16, v17, v16, vcc
        s_mov_b32 s38, {SEL}""")
        for i in range(8): k(f"v_and_or_b32 v{RES+8*q+i}, v{RES+8*q+i}, v18, s29")
        k(f"""buffer_store_dwordx4 {vr(RES+8*q,4)}, v16, {SW}, s38 offen sc1
        buffer_store_dwordx4 {vr(RES+8*q+4,4)}, v16, {SW}, s38 offen offset:16 sc1
        s_mov_b64 exec, -1
        s_branch L_selx{q}""")

    GB, CS, AC = 64, 128, 160
    k(f"""L_ffn1:
    s_mov_b32 s14, 0x400000
    s_mov_b32 s15, 0x20000
    s_mov_b32 s45, {CAND}
    s_cmp_lg_u32 s3, 7
    s_cbranch_scc1 L_f1""")
    cand_top2(32, vL16, 's63', issued='issue')
    k("s_waitcnt vmcnt(18)"); nonce(vEp)
    k("s_waitcnt vmcnt(2)\ns_barrier")
    stamp(1)
    cand_top2(32, vL16, 's63', issued=True, vm=0)
    stamp(2)
    k(f"""s_and_b32 s36, s46, 0xffff
    s_sub_u32 s36, 0xffff, s36
    s_and_b32 s37, s47, 0xffff
    s_sub_u32 s37, 0xffff, s37
    s_lshl_b32 s38, s36, 11
    s_lshl_b32 s39, s37, 11
    s_lshl_b32 s40, s32, 7
    s_add_u32 s38, s38, s40
    s_add_u32 s39, s39, s40
    s_mov_b32 m0, {FXS}""")
    setexec(0xff)
    k(f"""buffer_load_dwordx4 v{vL16}, {SX}, s38 offen lds
    s_mov_b32 m0, {FXS+128}
    s_and_b32 s40, s36, 15
    buffer_load_dwordx4 v{vL16}, {SX}, s39 offen lds
    s_lshl_b32 s40, s40, 10
    s_lshr_b32 s36, s36, 4
    s_lshl_b32 s36, s36, 3
    s_add_u32 s36, s36, s40
    s_add_u32 s36, s36, {STATS}
    s_and_b32 s40, s37, 15
    s_lshl_b32 s40, s40, 10
    s_lshr_b32 s37, s37, 4
    s_lshl_b32 s37, s37, 3
    s_add_u32 s37, s37, s40
    s_add_u32 s37, s37, {STATS}""")
    setexec(1)
    poll(lambda: k(f"buffer_load_dwordx2 v[40:41], off, {SW}, s36 sc1\nbuffer_load_dwordx2 v[42:43], off, {SW}, s37 sc1"),
         lambda: check_word([41, 43], 16), 's62')
    k(f"""v_and_b32 v44, 0xffff0000, v40
    v_and_b32 v45, 0xffff0000, v42
    v_rcp_f32 v44, v44
    v_rcp_f32 v45, v45
    v_lshlrev_b32 v46, 16, v40
    v_lshlrev_b32 v47, 16, v42
    v_mov_b32 v40, s46
    v_mov_b32 v41, s47
    v_mov_b32 v42, {FPAR}
    v_mul_f32 v46, v46, v44
    v_mul_f32 v47, v47, v45
    ds_write_b64 v42, v[40:41] offset:16
    ds_write_b128 v42, v[44:47]
    s_waitcnt lgkmcnt(0)""")
    setexec(-1)
    k("s_barrier")
    stamp(3)
    k(f"""s_branch L_f2
    L_f1:
    v_bfe_u32 v16, v{vL}, 2, 4
    v_mul_u32_u24 v16, {GUS}, v16
    v_and_b32 v17, 3, v{vL}
    s_lshl_b32 s36, s3, 7
    v_lshl_add_u32 v17, v17, 3, s36
    v_add_u32 v4, v16, v17
    v_add_u32 v5, {UPL}, v4
    v_and_b32 v16, 1, v{vL}
    v_and_b32 v17, 48, v{vL}
    v_lshl_add_u32 v6, v16, 7, v17
    v_add_u32 v6, {FXS}, v6
    v_mov_b32 v7, {FPAR}
    v_mov_b32 v9, 0xffffff00
    s_mul_i32 s36, s30, 7168
    s_lshl_b32 s37, s3, 10
    s_add_u32 s36, s36, s37
    s_add_u32 s36, s36, {AB}""")
    for i in range(4): k(f"v_mov_b32 v{12+i}, 0x3f803f80")
    k("s_waitcnt vmcnt(16)"); nonce(vEp)
    k("s_waitcnt vmcnt(0)\ns_barrier")
    stamp(1)
    for T in range(4):
        for mat in range(2):
            for ks in range(2):
                r = GB + 4 * ((T * 2 + mat) * 2 + ks)
                for v in range(2): k(f"ds_read_b64_tr_b16 {vr(r+2*v,2)}, v{4+mat} offset:{(32*ks+16*v)*GUS + 32*T}")
            if T >= 1 or mat >= 1:
                pass
    k("s_waitcnt lgkmcnt(0)")
    for j in range(8):
        for ks in range(2): k(f"v_mfma_f32_16x16x32_bf16 {vr(CS+4*j,4)}, v[12:15], {vr(GB+8*j+4*ks,4)}, {vr(CS+4*j,4) if ks else 0}")
    rowsel(16, [CS + 8 * mg for mg in range(4)]); rowsel(17, [CS + 8 * mg + 4 for mg in range(4)])
    k("s_barrier")
    stamp(3)
    k(f"""ds_read_b128 v[20:23], v6
    ds_read_b128 v[24:27], v6 offset:64
    ds_read_b128 v[28:31], v7
    s_waitcnt lgkmcnt(2)""")
    for j in range(8): k(f"v_mfma_f32_16x16x32_bf16 {vr(AC+4*j,4)}, v[20:23], {vr(GB+8*j,4)}, 0")
    k("s_waitcnt lgkmcnt(0)")
    for j in range(8):
        k(f"v_mfma_f32_16x16x32_bf16 {vr(AC+4*j,4)}, v[24:27], {vr(GB+8*j+4,4)}, {vr(AC+4*j,4)}")
        if j == 0: k("v_pk_mul_f32 v[32:33], v[30:31], v[16:17] op_sel:[0,0] op_sel_hi:[1,0] neg_lo:[1,0] neg_hi:[1,0]")
        if j == 1: k("v_mul_f32 v34, -v30, v17\nv_mul_f32 v35, -v31, v17")
    for i in range(4): rowsel(40 + i, [AC + 8 * mg + 4 * (i // 2) + i % 2 for mg in range(4)])
    k("v_pk_fma_f32 v[40:41], v[40:41], v[28:29], v[32:33]\nv_pk_fma_f32 v[42:43], v[42:43], v[28:29], v[34:35]")
    for i in range(4): k(f"v_and_or_b32 v{40+i}, v{40+i}, v9, s29")
    k(f"buffer_store_dwordx4 v[40:43], v{vL16}, {SW}, s36 offen sc1")
    stamp(4)
    k(f"""L_f2:
    s_cmp_ge_u32 s30, 64
    s_cbranch_scc1 L_fin
    v_lshrrev_b32 v16, 3, v0
    v_and_b32 v17, 7, v0
    v_lshlrev_b32 v16, 13, v16
    v_lshl_add_u32 v4, v17, 4, v16
    s_lshl_b32 s36, s30, 7
    s_add_u32 s36, s36, {BB}
    s_add_u32 s37, s36, {64*8192}
    v_lshlrev_b32 v5, 2, v0
    v_lshlrev_b32 v6, 2, v{vL}
    v_mov_b32 v8, -1
    s_cmp_lg_u32 s3, 0
    s_cbranch_scc1 L_r1
    v_lshrrev_b32 v18, 5, v{vL}
    v_lshlrev_b32 v19, 2, v18
    v_add_u32 v19, {FKEY}, v19
    ds_read_b32 v19, v19
    s_lshr_b32 s38, s30, 1
    s_lshl_b32 s38, s38, 5
    s_and_b32 s39, s30, 1
    s_lshl_b32 s39, s39, 3
    s_add_u32 s38, s38, s39
    v_and_b32 v16, 16, v{vL}
    v_add3_u32 v17, v17, v16, s38
    v_lshlrev_b32 v16, 12, v18
    v_lshl_add_u32 v7, v17, 2, v16
    s_mov_b32 s38, {SEL}
    s_waitcnt lgkmcnt(0)
    v_ashrrev_i32 v16, 31, v19
    v_not_b32 v16, v16
    v_or_b32 v16, 0x80000000, v16
    v_xor_b32 v16, v16, v19
    v_and_b32 v16, 0xffff0000, v16
    v_mul_f32 v16, 0xbfb8aa3b, v16
    v_exp_f32 v16, v16
    v_and_b32 v19, 0xffff, v19
    v_add_f32 v16, 1.0, v16
    v_rcp_f32 v16, v16
    v_sub_u32 v19, 0xffff, v19
    v_lshlrev_b32 v19, 11, v19
    v_lshl_add_u32 v8, v17, 1, v19
    v_cvt_pk_bf16_f32 v16, v16, v16
    v_and_b32 v10, 0xffff0000, v16""")
    poll(lambda: k(f"buffer_load_dword v11, v7, {SW}, s38 offen sc1"), lambda: check_f32([11], 16), 's61')
    k("L_r1:")
    stamp(5)
    k("s_cmp_ge_u32 s3, 6\ns_cbranch_scc1 L_r2")
    poll(lambda: k(f"buffer_load_dwordx4 v[20:23], v4, {SW}, s36 offen sc1\nbuffer_load_dwordx4 v[24:27], v4, {SW}, s37 offen sc1"),
         lambda: check_f32(range(20, 28), 16), 's60')
    k("v_pk_add_f32 v[20:21], v[20:21], v[24:25]\nv_pk_add_f32 v[22:23], v[22:23], v[26:27]\ns_branch L_r3\nL_r2:")
    poll(lambda: k(f"buffer_load_dwordx4 v[20:23], v4, {SW}, s36 offen sc1"), lambda: check_f32(range(20, 24), 16), 's60')
    k("L_r3:")
    stamp(6)
    k(f"""v_permlane32_swap_b32 v20, v21
    v_permlane32_swap_b32 v22, v23
    v_add_f32 v20, v20, v21
    v_add_f32 v22, v22, v23
    v_permlane16_swap_b32 v20, v22
    v_add_f32 v20, v20, v22
    v_add_f32_dpp v20, v20, v20 row_ror:8 {FULL}
    ds_write_b32 v5, v20 offset:{FRED}
    s_waitcnt lgkmcnt(0)
    s_barrier
    s_cmp_lg_u32 s3, 0
    s_cbranch_scc1 L_fin""")
    for i in range(4): k(f"ds_read2st64_b32 {vr(20+2*i,2)}, v6 offset0:{FRED//256+2*i} offset1:{FRED//256+2*i+1}")
    k(f"""s_waitcnt lgkmcnt(2)
    v_pk_add_f32 v[20:21], v[20:21], v[22:23]
    s_waitcnt lgkmcnt(0)
    v_pk_add_f32 v[24:25], v[24:25], v[26:27]
    v_pk_add_f32 v[20:21], v[20:21], v[24:25]
    v_add_f32 v20, v20, v21
    v_cvt_pk_bf16_f32 v20, v20, v20
    v_and_b32 v20, 0xffff0000, v20
    v_mul_f32 v20, v20, v10
    v_cvt_pk_bf16_f32 v20, v20, v20
    v_and_b32 v20, 0xffff0000, v20
    v_add_f32 v20, v20, v11
    v_cvt_pk_bf16_f32 v20, v20, v20""")
    setexec(0x00ff00ff00ff00ff)
    k(f"""buffer_store_short v20, v8, {SO}, 0 offen
    s_cmp_lg_u32 s30, 0
    s_cbranch_scc1 L_fin
    v_mov_b32 v16, s24""")
    setexec(1)
    k(f"buffer_store_dword v16, off, {SW}, 0 sc1")
    k("L_fin:")
    if stamps:
        stamp(12)
        k("s_waitcnt vmcnt(0)")
        stamp(13)
        k(f"""s_mov_b64 exec, -1
        s_waitcnt lgkmcnt(0)
        s_lshl_b32 s36, s2, 3
        s_add_u32 s36, s36, s3
        s_lshl_b32 s36, s36, 6
        s_add_u32 s36, s36, {STAMP}""")
        for i in range(14): k(f"v_mov_b32 v{16+i}, s{64+2*i}")
        k("v_mov_b32 v30, s63\nv_mov_b32 v31, s60\ns_mov_b64 exec, 1")
        for i in range(4): k(f"buffer_store_dwordx4 {vr(16+4*i,4)}, off, {SW}, s36 offset:{16*i}")
    k("L_end:\ns_endpgm")
    body, nn = add_nops(k.l)
    return f"; @launch grid=(256,1,1) block=(512,1,1) lds={LDS}\n" + wrap(name, body), nn

if __name__ == '__main__':
    args = eval(sys.argv[2]) if len(sys.argv) > 2 else {}
    t, nn = gen(**args)
    open(sys.argv[1], 'w').write(t)
    print('lines', t.count('\n'), 'nop states', nn, 'lds', LDS)
```

```python
import numpy as np
S, D = 2048, 1024
L = np.arange(64)
def bf16(x):
    x = np.asarray(x, np.float32); u = x.view(np.uint32).astype(np.uint64)
    u = (u + 0x7fff + ((u >> 16) & 1)) & 0xffff0000
    return u.astype(np.uint32).view(np.float32)
def f16(x): return np.asarray(x, np.float32).astype(np.float16).astype(np.float32)
def k2_of(i2):
    r = i2 & 3; h = (i2 >> 2) & 1; q = i2 >> 3
    mag = 1 + r + 4 * (q & 1) + 7 * h
    k = np.where(q >= 2, -mag, mag)
    k = np.where(i2 == 11, 0, k); k = np.where(i2 == 27, -16, k)
    return k
def mfma32(A, B, C):
    Am = np.zeros((32, 16)); Bm = np.zeros((16, 32))
    for l in range(64):
        Am[l % 32, 8 * (l // 32):8 * (l // 32) + 8] = A[l]
        Bm[8 * (l // 32):8 * (l // 32) + 8, l % 32] = B[l]
    Dm = Am @ Bm
    out = np.array(C, dtype=np.float64)
    for l in range(64):
        for g in range(16):
            out[l, g] += Dm[(g & 3) + 8 * (g >> 2) + 4 * (l // 32), l % 32]
    return out
def mfma16(A, B, C):
    Am = np.zeros((16, 32)); Bm = np.zeros((32, 16))
    for l in range(64):
        Am[l % 16, 8 * (l // 16):8 * (l // 16) + 8] = A[l]
        Bm[8 * (l // 16):8 * (l // 16) + 8, l % 16] = B[l]
    Dm = Am @ Bm
    out = np.array(C, dtype=np.float64)
    for l in range(64):
        for r in range(4): out[l, r] += Dm[4 * (l // 16) + r, l % 16]
    return out
def trread(lds, addr):
    assert np.all(addr % 8 == 0)
    out = np.zeros((64, 4))
    for G in range(4):
        for ll in range(16):
            c, e = ll // 4, ll % 4
            for r in range(4): out[16 * G + ll, r] = lds[addr[16 * G + 4 * r + c] // 2 + e]
    return out
def rows_of(p, w):
    if p > 0: s = p + 256 * w; return s, 2048 - s
    if w == 0: return 0, 1024
    s = 256 * w if w < 4 else 128 + 256 * (w - 4)
    return s, 2048 - s
def stats(x):
    mean = x.astype(np.float64).mean(-1); var = (x.astype(np.float64) ** 2).mean(-1) - mean ** 2
    m = bf16(mean); v = bf16(np.maximum(var, 0)); v2 = bf16(v + np.float32(1e-5)); sg = bf16(np.sqrt(v2))
    return m, sg
RS = 1088; PL0 = 2 * RS
NEG = 528; XLOC = 1056
def x_phase(x, p, m, sg):
    h = L // 32; i2 = L % 32; k2 = k2_of(i2)
    lds = np.full(32 * 1024, np.nan)
    B1p = np.zeros((2, 64, 8)); B1m = np.zeros((2, 64, 8))
    for u in range(2):
        for idx in range(8):
            n2 = 16 * u + 8 * h + idx; a = 2 * np.pi * n2 * k2 / 32
            B1p[u, :, idx] = bf16(np.cos(a) + np.sin(a)); B1m[u, :, idx] = bf16(np.cos(a) - np.sin(a))
    TWc = np.zeros((64, 16)); TWs = np.zeros((64, 16)); B2 = np.zeros((4, 64, 8))
    for g in range(16):
        n1 = (g & 3) + 8 * (g >> 2) + 4 * h
        TWc[:, g] = np.cos(2 * np.pi * n1 * k2 / 1024); TWs[:, g] = np.sin(2 * np.pi * n1 * k2 / 1024)
        B2[g >> 2, :, g & 3] = f16(np.cos(2 * np.pi * n1 * i2 / 32)); B2[g >> 2, :, 4 + (g & 3)] = f16(np.sin(2 * np.pi * n1 * i2 / 32))
    G = L // 16; r = (L % 16) // 4; c = L % 4
    atr = (8 * (G // 2) + r) * 64 + (G % 2) * 32 + c * 8
    Lk = i2
    plus, minus = 0, RS
    up = Lk >= 16
    blk = np.where(Lk > 16, 32 - Lk, Lk % 16)
    aP = np.where(up, minus + NEG, plus) + h * 256 + blk * 16
    aN = np.where(Lk == 0, minus, np.where(Lk > 16, minus, plus + NEG)) + h * 256 + blk * 16
    f1 = np.where((Lk == 0) | (Lk > 16), minus + blk * 16 + 14, np.where(Lk == 16, XLOC, aP + 14))
    f2 = np.where((Lk >= 1) & (Lk <= 16), plus + NEG + (Lk % 16) * 16 + 14, minus + NEG + ((33 - Lk) % 16) * 16 + 14)
    f1 = np.where(h == 1, aP + 14, f1); f2 = np.where(h == 1, aN + 14, f2)
    jobs = [(w, w) for w in range(8)] + ([(0, 8)] if p == 0 else [])
    for (w, job) in jobs:
        sA, sB = rows_of(p, w)
        acc = {}
        for nm, s in (('A', sA), ('B', sB)):
            row = x[s].astype(np.float64)
            P = np.zeros((64, 16)); M = np.zeros((64, 16))
            for u in range(2):
                A1 = np.concatenate([trread(row, atr + u * 1024 + v * 256) for v in range(2)], 1)
                P = mfma32(A1, B1p[u], P); M = mfma32(A1, B1m[u], M)
            acc[nm] = (P, M)
        rsA, rsB = 1 / sg[sA], 1 / sg[sB]; tA, tB = m[sA] * rsA, m[sB] * rsB
        if p == 0 and w == 0:
            if job == 0: rsB = tB = 0
            else: rsA = tA = 0
        K0 = np.where(k2 == 0, -32.0, 0.0)[:, None]
        Wr = acc['A'][0] * rsA + K0 * (tA + tB) + acc['B'][1] * rsB
        Wi = acc['A'][1] * rsA + K0 * (tA - tB) - acc['B'][0] * rsB
        Wr2 = f16(Wr * TWc + Wi * TWs); Wi2 = f16(Wi * TWc - Wr * TWs)
        D2 = np.zeros((64, 16))
        for u in range(4):
            D2 = mfma32(np.concatenate([Wr2[:, 4*u:4*u+4], Wi2[:, 4*u:4*u+4]], 1), B2[u], D2)
        D2 = f16(D2)
        base = PL0 + (2 * job * RS if job < 8 else -2 * RS)
        for l in range(64):
            lds[(base + aP[l]) // 2:(base + aP[l]) // 2 + 8] = D2[l, 0:8]
        for l in range(64):
            lds[(base + aN[l]) // 2:(base + aN[l]) // 2 + 8] = D2[l, 8:16]
        for l in range(64): lds[(base + f1[l]) // 2] = D2[l, 7]
        for l in range(64): lds[(base + f2[l]) // 2] = D2[l, 15]
    mm = L % 16; kg = L // 16; kw = mm // 2; ri = mm % 2
    RA = np.zeros((64, 8))
    for d in range(4):
        if p > 0:
            s = p + 1024 * kg + 256 * d; a = kw * s / 2048 + 0.125 - ri / 4; sc = np.where(kg < 2, 1.0, 0)
        else:
            s = np.choose(kg, [0, 128, 1024, 0]) + 256 * d; a = kw * s / 2048 + 0.125
            sc = np.where(kg == 0, 1 - ri, np.where(kg == 1, ri, np.where((kg == 2) & (d == 0), 1 - ri, 0)))
        sc = sc * np.sqrt(2) / 4
        RA[:, 2*d] = f16(np.cos(2*np.pi*a) * sc); RA[:, 2*d+1] = f16(np.sin(2*np.pi*a) * sc)
    rowb = np.where(kg < 2, 8 * kg, np.where((kg == 2) & (p == 0), -2, 0))
    Z = np.zeros((8, 8, 16, 8)); E = np.zeros((8, 8, 2))
    r = (L % 16) // 4; c = L % 4
    for g in range(8):
        blk = (2 * g + (c + 1) // 2) % 16
        ab = PL0 + (rowb + r) * RS + (c % 2) * NEG + blk * 16
        T = []
        for j in range(4):
            Bop = np.concatenate([trread(lds, ab + v * 4 * RS + (j // 2) * 256 + (j % 2) * 8) for v in range(2)], 1)
            assert not np.isnan(Bop).any()
            T.append(mfma16(RA, Bop, np.zeros((64, 4))))
        for l in range(64):
            for kk in range(2):
                Z[2 * (l // 16) + kk, g, l % 16] = f16([T[j][l, 2*kk] for j in range(4)] + [T[j][l, 2*kk+1] for j in range(4)])
    n = L % 8
    aEp = PL0 + rowb * RS + np.where(n == 7, XLOC, 2 * (n + 1) * 16 + 14)
    aEm = np.where(n == 7, aEp, aEp + RS)
    Bop = np.zeros((64, 8))
    for d in range(4):
        Bop[:, 2*d] = lds[(aEp + d * 2 * RS) // 2]; Bop[:, 2*d+1] = lds[(aEm + d * 2 * RS) // 2]
    assert not np.isnan(Bop).any()
    T = mfma16(RA, Bop, np.zeros((64, 4)))
    for l in range(64):
        if l % 16 < 8:
            for kk in range(2): E[2 * (l // 16) + kk, l % 16] = f16(T[l, 2*kk:2*kk+2])
    return Z, E
OP = np.array([[1,2,3,4],[5,6,7,0],[8,9,10,11],[12,13,14,15]])
OM = np.array([[15,14,13,12],[11,10,9,0],[8,7,6,5],[4,3,2,1]])
def y_phase(Zall, Eall, kw, par, g):
    sig = 1 - 2 * par
    lds = np.full(8192, np.nan); XF = np.zeros((64, 2))
    for pp in range(64):
        p2 = 128 - pp if pp else 64
        for n in range(16):
            a = Zall[pp][kw, g, n].copy(); b = Zall[p2][kw, g, n].copy()
            if pp == 0:
                t = a[4:].copy(); a[4:] = b[4:] if par else b[:4]; b[:4] = t; b[4:] = 0
            o = np.concatenate([f16(a[:4] + sig * b[:4]), f16(a[4:] - sig * b[4:])])
            ad = pp * 256 + ((n * 16) ^ ((pp & 1) << 6)); lds[ad // 2:ad // 2 + 8] = o
        a = Eall[pp][kw, g]; b = Eall[p2][kw, g]
        if pp == 0: XF[0] = [f16(a[0] + sig * a[1]), b[1] if par else b[0]]
        else: XF[pp] = [f16(a[0] + sig * b[0]), f16(a[1] - sig * b[1])]
    img = np.full((128, 65), np.nan)
    G = L // 16; r = (L % 16) // 4; cp = L % 4; kg = G // 2; gi = G % 2
    for w in range(8):
        jt, et = w % 4, w // 4
        kp = 2 * (32 * jt + L % 32) + par
        n = 4 * (et + 2 * (cp % 2)) + 2 * gi + cp // 2
        ab = (4 * kg + r // 2) * 256 + ((n * 16 + (r % 2) * 8) ^ ((r // 2) << 6))
        acc = np.zeros((64, 16)); xo = np.zeros(64)
        for u in range(8):
            Bm = np.zeros((64, 8))
            for d in range(4):
                pq = 8 * u + 4 * (L // 32) + d; th = 2 * np.pi * kp * pq / 256
                Bm[:, 2*d] = f16(np.cos(th) / 32)
                Bm[:, 2*d+1] = f16(np.where(pq == 0, np.cos(np.pi * kp / 2) - np.sin(np.pi * kp / 2), -np.sin(th)) / 32)
            A = np.concatenate([trread(lds, ab + u * 2048 + v * 512) for v in range(2)], 1)
            acc = mfma32(A, Bm, acc)
            xo += (Bm * XF[8 * u + 4 * (L // 32)[:, None] + np.arange(4)[None, :]].reshape(64, 8)).sum(1)
        for l in range(64):
            c = et + 2 * (l // 32); O = OM if et else OP
            for q in range(4):
                for j in range(4): img[32 * jt + l % 32, 16 * c + O[j][q]] = f16(acc[l, 4 * q + j])
        img[32 * jt:32 * jt + 32, 64] = f16(xo[:32] + xo[32:])
    return img
if __name__ == '__main__':
    rng = np.random.default_rng(0)
    x = bf16(rng.standard_normal((S, D)) * 0.05 + 0.01)
    m, sg = stats(x)
    xn = (x.astype(np.float64) - m[:, None]) / sg[:, None]
    y = np.fft.fft2(xn).real
    ZE = [x_phase(x, p, m, sg) for p in range(128)]
    Zs = [z for z, _ in ZE]; Es = [e for _, e in ZE]
    for (kw, par, g) in [(0, 0, 0), (0, 1, 7), (3, 0, 2), (5, 1, 7), (4, 1, 0), (7, 0, 5)]:
        img = y_phase(Zs, Es, kw, par, g) * 64
        t = kw + 8 * par + 16 * np.arange(128)
        ref = y[t][:, 64 * g:64 * g + 65]
        print(kw, par, g, 'max err', np.abs(img - ref).max(), 'rms err', np.sqrt(((img - ref) ** 2).mean()), 'rms', np.sqrt((ref ** 2).mean()))
```

```python
import numpy as np
from model import bf16, k2_of
L = np.arange(64)
def h16(x): return np.asarray(x, np.float64).astype(np.float16).view(np.uint16).astype(np.uint32)
def b16(x): return (bf16(x).view(np.uint32) >> 16).astype(np.uint32)
def pack(h): return (h[..., 0::2] | (h[..., 1::2] << 16)).astype(np.uint32)
def tables(c):
    h = L // 32; i2 = L % 32; k2 = k2_of(i2); RS, NEG, XLOC, PL0 = c.RS, c.NEG, c.XLOC, c.PL0
    B1 = np.zeros((4, 64, 8), np.uint32)
    for u in range(2):
        for idx in range(8):
            a = 2 * np.pi * (16 * u + 8 * h + idx) * k2 / 32
            B1[u, :, idx] = b16(np.cos(a) + np.sin(a)); B1[2 + u, :, idx] = b16(np.cos(a) - np.sin(a))
    TW = np.zeros((4, 64, 8), np.uint32); B2 = np.zeros((4, 64, 8), np.uint32)
    for g in range(16):
        n1 = (g & 3) + 8 * (g >> 2) + 4 * h
        TW[g >> 2, :, g & 3] = h16(np.cos(2 * np.pi * n1 * k2 / 1024)); TW[g >> 2, :, 4 + (g & 3)] = h16(np.sin(2 * np.pi * n1 * k2 / 1024))
        B2[g >> 2, :, g & 3] = h16(np.cos(2 * np.pi * n1 * i2 / 32)); B2[g >> 2, :, 4 + (g & 3)] = h16(np.sin(2 * np.pi * n1 * i2 / 32))
    Lk = i2; plus, minus = 0, RS
    blk = np.where(Lk > 16, 32 - Lk, Lk % 16)
    aP = np.where(Lk >= 16, minus + NEG, plus) + h * 256 + blk * 16
    aN = np.where(Lk == 0, minus, np.where(Lk > 16, minus, plus + NEG)) + h * 256 + blk * 16
    f1 = np.where((Lk == 0) | (Lk > 16), minus + blk * 16 + 14, np.where(Lk == 16, XLOC, aP + 14))
    f2 = np.where((Lk >= 1) & (Lk <= 16), plus + NEG + (Lk % 16) * 16 + 14, minus + NEG + ((33 - Lk) % 16) * 16 + 14)
    f1 = np.where(h == 1, aP + 14, f1); f2 = np.where(h == 1, aN + 14, f2)
    X0 = np.stack([aP, aN, f1, f2], 1) + PL0
    kg = L // 16; r = (L % 16) // 4; cc = L % 4; n = L % 8
    X1 = []; X2 = []
    for p0 in (0, 1):
        rowb = np.where(kg < 2, 8 * kg, np.where((kg == 2) & (p0 == 1), -2, 0))
        ab = PL0 + (rowb + r) * RS + (cc % 2) * NEG
        K0 = np.where(k2 == 0, np.float32(-32.0), np.float32(0)).astype(np.float32).view(np.uint32)
        X1.append(np.stack([ab, (cc + 1) // 2 * 16, kg * 4096 + (L % 16) * 16, K0], 1))
        aEp = PL0 + rowb * RS + np.where(n == 7, XLOC, 2 * (n + 1) * 16 + 14)
        aEm = np.where(n == 7, aEp, aEp + RS)
        X2.append(np.stack([aEp, aEm, kg * 128 + (L % 16) * 8 if c.extl else kg * 16384 + (L % 16) * 1024, 0 * L], 1))
    n16 = (L % 16) * 16
    gi = kg % 2; cp = L % 4
    nn = 8 * (cp % 2) + 2 * gi + cp // 2
    yr = (4 * h + r // 2) * 256 + ((nn * 16 + (r % 2) * 8) ^ ((r // 2) << 6))
    Y0 = np.stack([kg * 16384 + n16, (3 - kg) * 16384 + n16, kg * 256 + (n16 ^ ((kg & 1) << 6)), yr], 1)
    Y1 = np.stack([h * 16, i2 * c.SRS + h * 64, (L >> 3) * c.SRS + (L & 7) * 16, i2 * c.SRS + 128], 1)
    Y2 = np.stack([(L >> 3) * 16, (7 - (L >> 3)) * 16, 8 * L * (64 if c.extl else 1), np.where(L == 0, 512, 1024 - 8 * L) * (64 if c.extl else 1)], 1)
    z = np.zeros((64, 4), np.int64)
    slots = [pack(TW[q]) for q in range(4)] + [pack(B2[q]) for q in range(4)] + [X0, Y0, Y1, Y2, X1[0], X2[0], X1[1], X2[1]]
    com = np.concatenate([pack(B1).ravel()] + [np.asarray(s).astype(np.uint32).ravel() for s in slots])
    YB = np.zeros((2, 4, 8, 64, 8), np.uint32)
    for par in range(2):
        for jt in range(4):
            kp = 2 * (32 * jt + i2) + par
            for u in range(8):
                for d in range(4):
                    pq = 8 * u + 4 * h + d; th = 2 * np.pi * kp * pq / 256
                    YB[par, jt, u, :, 2 * d] = h16(np.cos(th) / 32)
                    YB[par, jt, u, :, 2 * d + 1] = h16(np.where(pq == 0, np.cos(np.pi * kp / 2) - np.sin(np.pi * kp / 2), -np.sin(th)) / 32)
    RA = np.zeros((128, 64, 8), np.uint32)
    mm = L % 16; kw = mm // 2; ri = mm % 2
    for p in range(128):
        for d in range(4):
            if p > 0:
                s = p + 1024 * kg + 256 * d; a = kw * s / 2048 + 0.125 - ri / 4; sc = np.where(kg < 2, 1.0, 0)
            else:
                s = np.choose(kg, [0, 128, 1024, 0]) + 256 * d; a = kw * s / 2048 + 0.125
                sc = np.where(kg == 0, 1 - ri, np.where(kg == 1, ri, np.where((kg == 2) & (d == 0), 1 - ri, 0)))
            sc = sc * np.sqrt(2) / 4 * c.ZSC
            RA[p, :, 2 * d] = h16(np.cos(2 * np.pi * a) * sc + 0.0); RA[p, :, 2 * d + 1] = h16(np.sin(2 * np.pi * a) * sc + 0.0)
    return com, pack(YB).ravel(), pack(RA).ravel()
def emit(dw):
    q = dw.astype(np.uint64); q = q[0::2] | (q[1::2] << np.uint64(32))
    return ''.join('.quad ' + ','.join(f'{int(v):#x}' if v else '0' for v in q[i:i + 16]) + '\n' for i in range(0, len(q), 16))
```

```python
import sys, os, struct
sys.path.insert(0, os.path.dirname(__file__))
from asmlib import *
import tabs
NAME = 'parallel_sum__spectral_fnet__moe_arch_mod__prompt'
EPOCH = 0; SEL = 4096; STATS = 3 << 16; EXT = 65536; CAND = 131072
ZB = 1 << 20; AB = 3 << 20; BB = 4 << 20; STAMP = 6 << 20; WSN = 8 << 20
XS = 0; XRS = 2064; RS = 1088; NEG = 528; XLOC = 1056; SRS = 144
YIMG = 0; XF = 16384; STG = 16896
LB1 = 35328; LT = LB1 + 4096; SACC = LT + 16384; SDUM = SACC + 2048; TOPL = SDUM + 2048; PL = TOPL + 64; PL0 = PL + 2 * RS
YBL = PL + 18 * RS; LDS_FFT = YBL + 32768
GUS = 928; UPL = 64 * GUS; WDS = 2080; WD1 = 0; WD0 = 128 * GUS; FXS = WD0 + 16 * WDS; FPAR = FXS + 256; RED = FPAR + 64; HB = RED + 4096; FRED = HB + 1024
LDS = max(LDS_FFT, FRED + 2048)
SX, SW, SO, S3, S4, S5 = 's[4:7]', 's[8:11]', 's[12:15]', 's[16:19]', 's[20:23]', 's[40:43]'
def fb(x): return struct.unpack('<I', struct.pack('<f', x))[0]
def hx_(x): return f'{fb(x):#x}'
def vr(a, n): return f'v[{a}:{a+n-1}]'
OP = [[1,2,3,4],[5,6,7,0],[8,9,10,11],[12,13,14,15]]
OM = [[15,14,13,12],[11,10,9,0],[8,7,6,5],[4,3,2,1]]

def gen(stamps=False, maxit=1 << 16, crep=8, trunc=0, pf=1, wd1=16, prio=0, mfb=2, pfc=2, xb=1, fastc=1, extl=1, wpf=1, pfw=0, pfr=1, order='btwx', xexp=0, yexp=0, zb=1, name=NAME + '_kernel'):
    class C: pass
    c = C(); c.RS, c.NEG, c.XLOC, c.PL0, c.SRS = RS, NEG, XLOC, PL0, SRS; c.ZSC = 1.00105 if trunc else 1.0; c.extl = extl
    com, yb, ra = tabs.tables(c)
    TCOM = 4096; TYB = com.size * 4; TRA = TYB + yb.size * 4; TSZ = TRA + ra.size * 4
    k = KB()
    def stamp(i):
        if stamps: k(f"s_memrealtime s[{64+2*i}:{65+2*i}]")
    def mask64(reg, val):
        k(f"s_mov_b32 s{reg}, {val & 0xffffffff:#x}\ns_mov_b32 s{reg+1}, {val >> 32:#x}")
    def setexec(val):
        if val == -1 or val < 64: k(f"s_mov_b64 exec, {val}")
        elif val < 1 << 31: k(f"s_mov_b64 exec, {val:#x}")
        else: k(f"s_mov_b32 exec_lo, {val & 0xffffffff:#x}\ns_mov_b32 exec_hi, {val >> 32:#x}")
    def poll(issue, check, cnt, issued=False, vm=0):
        L = k.lab('P')
        k(f"s_mov_b32 {cnt}, 0")
        if issued: k(f"s_waitcnt vmcnt({vm})\ns_branch {L}_c")
        k(f"{L}:"); issue(); k(f"s_waitcnt vmcnt(0)\n{L}_c:"); check()
        k(f"s_cbranch_vccz {L}_x\ns_add_u32 {cnt}, {cnt}, 1\ns_cmp_lt_u32 {cnt}, {maxit}\ns_cbranch_scc1 {L}\n{L}_x:")
    def or_tree(regs, acc):
        regs = list(regs)
        if len(regs) == 1: k(f"v_mov_b32 v{acc}, v{regs[0]}"); return
        if len(regs) == 2: k(f"v_or_b32 v{acc}, v{regs[0]}, v{regs[1]}"); return
        k(f"v_or3_b32 v{acc}, v{regs[0]}, v{regs[1]}, v{regs[2]}"); regs = regs[3:]
        while len(regs) >= 2: k(f"v_or3_b32 v{acc}, v{acc}, v{regs[0]}, v{regs[1]}"); regs = regs[2:]
        if regs: k(f"v_or_b32 v{acc}, v{acc}, v{regs[0]}")
    def check_f32(regs, acc, vt):
        for r in regs: k(f"v_xor_b32 v{r}, v{vt}, v{r}")
        or_tree(regs, acc); k(f"v_and_b32 v{acc}, 0xff, v{acc}\nv_cmp_ne_u32 vcc, 0, v{acc}")
    def check_word(regs):
        k(f"v_cmp_ne_u32 vcc, s24, v{regs[0]}")
        for r in regs[1:]: k(f"v_cmp_ne_u32 s[38:39], s24, v{r}\ns_or_b64 vcc, vcc, s[38:39]")
    def top2_step(a, b, t, ctrl):
        k(f"""v_min_u32_dpp v{t}, v{a}, v{a} {ctrl}
        v_max_u32_dpp v{b}, v{b}, v{b} {ctrl}
        v_max_u32_dpp v{a}, v{a}, v{a} {ctrl}
        v_max_u32 v{b}, v{b}, v{t}""")
    FULL = 'row_mask:0xf bank_mask:0xf'
    def cand_top2(c, voff, cnt, issued=False, vm=0):
        def issue():
            k(f"buffer_load_dwordx4 {vr(c,4)}, v{voff}, {SW}, s45 offen sc1\nbuffer_load_dwordx4 {vr(c+4,4)}, v{voff}, {SW}, s45 offen offset:1024 sc1")
        if issued == 'issue': issue(); return
        poll(issue, lambda: check_word([c + 2, c + 6]), cnt, issued, vm)
        a, b, t = c + 2, c + 3, c + 6
        k(f"v_max_u32 v{a}, v{c}, v{c+4}\nv_min_u32 v{t}, v{c}, v{c+4}\nv_max3_u32 v{b}, v{t}, v{c+1}, v{c+5}")
        for s in (8, 4, 2, 1): top2_step(a, b, t, f'row_ror:{s} {FULL}')
        top2_step(a, b, t, 'row_bcast:15 row_mask:0xa bank_mask:0xf')
        top2_step(a, b, t, 'row_bcast:31 row_mask:0xc bank_mask:0xf')
        k(f"v_readlane_b32 s46, v{a}, 63\nv_readlane_b32 s47, v{b}, 63")
    def rowsel(dst, srcs):
        if srcs[0] != dst: k(f"v_mov_b32 v{dst}, v{srcs[0]}")
        for mg in (1, 2, 3): k(f"v_mov_b32_dpp v{dst}, v{srcs[mg]} quad_perm:[0,1,2,3] row_mask:{1<<mg:#x} bank_mask:0xf")

    vL, vL16 = 1, 2
    vATR, vXB, vSA1, vSA2, vSRD, vRK, vSO, vMSK = 4, 5, 6, 7, 8, 9, 10, 11
    vAP, vAN, vF1, vF2 = 12, 13, 14, 15
    vABb, vABk, vZO, vK0, vEP, vEM, vEX = 20, 21, 22, 23, 24, 25, 26
    WA, XT, ON, D1, DD, D3 = 32, 48, 64, 68, 72, 76
    TW, B2, B1P, B1M, D2, RA, XA, XB, WO, WT = 80, 96, 112, 120, 112, 128, 132, 140, 148, 156
    PA, MA, PB, MB, XR = 176, 192, 208, 224, 240
    ST, vST0, vST1, vE0, vE1 = 112, 228, 229, 230, 231
    SOT = 112
    vOF = 172
    stamp(0)
    k(f"""s_load_dwordx2 s[4:5], s[0:1], 0
    s_load_dwordx2 s[8:9], s[0:1], 96
    s_load_dwordx2 s[12:13], s[0:1], 80
    s_getpc_b64 s[26:27]
    L_pc:
    s_add_u32 s16, s26, L_tab@rel32@lo+4
    s_addc_u32 s17, s27, L_tab@rel32@hi+12
    v_lshrrev_b32 v3, 6, v0
    v_and_b32 v{vL}, 63, v0
    s_mov_b32 s7, 0x20000
    v_readfirstlane_b32 s3, v3
    s_mov_b32 s11, 0x20000
    s_mov_b32 s19, 0x20000
    s_mov_b32 s23, 0x20000
    v_lshlrev_b32 v{vL16}, 4, v{vL}
    s_mov_b32 s18, {TRA-128}
    s_cmp_ge_u32 s2, 128
    s_cbranch_scc1 L_ffn0
    s_load_dwordx2 s[20:21], s[0:1], 48
    s_mov_b32 s18, {TSZ}
    s_lshl_b32 s30, s3, 8
    v_and_b32 v16, 15, v{vL}
    v_lshrrev_b32 v17, 4, v{vL}
    v_cmp_eq_u32 vcc, 4, v16
    v_mov_b32 v{ON}, 0x3f803f80
    v_lshl_add_u32 v18, v17, 4, s30
    s_add_u32 s30, s30, s2
    s_cmp_eq_u32 s2, 0
    s_cselect_b32 s32, 896, 0
    v_cndmask_b32_e64 v{WA}, 0, v{ON}, vcc
    s_cmp_ge_u32 s3, 4
    s_cselect_b32 s32, s32, 0
    s_sub_u32 s30, s30, s32
    s_sub_u32 s31, 2048, s30
    s_cmp_eq_u32 s30, 0
    s_cselect_b32 s31, 1024, s31
    s_lshl_b32 s32, s30, 11
    s_lshl_b32 s33, s31, 11
    s_mul_i32 s34, s3, {2*XRS}
    s_mov_b32 s6, 0x400000
    s_mov_b32 s22, 2048""")
    def ld_t(sal=True):
        if sal: k(f"""s_lshl_b32 s46, s3, 11
        s_add_u32 s39, s46, {LT}
        s_add_u32 s46, s46, {TCOM}
        s_cmp_eq_u32 s2, 0
        s_cselect_b32 s37, 2048, 0
        s_add_u32 s37, s37, s46
        s_cmp_eq_u32 s3, 6
        s_cselect_b32 s46, s37, s46
        s_lshl_b32 s37, s2, 10
        s_add_u32 s37, s37, {TRA}
        s_cmp_eq_u32 s3, 7
        s_cselect_b32 s46, s37, s46""")
        if sal != 'only': k(f"s_mov_b32 m0, s39\nbuffer_load_dwordx4 v{vL16}, {S3}, s46 offen lds\nbuffer_load_dwordx4 v{vL16}, {S3}, s46 offen offset:1024 lds")
    def ld_b():
        k(f"""s_lshl_b32 s38, s3, 9
        s_add_u32 m0, s38, {LB1}
        s_mov_b32 exec_hi, 0
        buffer_load_dwordx4 v{vL16}, {S3}, s38 offen lds
        s_mov_b32 exec_hi, -1""")
    def ld_w():
        k("s_mov_b32 exec_lo, 0x01010101\ns_mov_b32 exec_hi, 0x01010101")
        for u in range(4): k(f"buffer_load_dwordx4 {vr(WA+4*u,4)}, v18, {S4}, 0 offen offset:{64*u}")
        k("s_mov_b64 exec, -1")
    pre, post = order.split('x')
    ld = dict(t=ld_t, b=ld_b, w=ld_w, s=lambda: ld_t('only'))
    for ch in pre:
        if ch != 'w': ld[ch]()
    for i in range(1, 16): k(f"v_mov_b32 v{WA+i}, v{WA}")
    k("s_mov_b32 m0, s34\ns_waitcnt lgkmcnt(0)")
    stamp(14)
    if 'w' in pre: ld_w()
    k(f"""buffer_load_dwordx4 v{vL16}, {SX}, s32 offen lds
    buffer_load_dwordx4 v{vL16}, {SX}, s32 offen offset:1024 lds
    s_add_u32 m0, m0, {XRS}
    s_load_dword s24, s[8:9], 0
    buffer_load_dwordx4 v{vL16}, {SX}, s33 offen lds
    buffer_load_dwordx4 v{vL16}, {SX}, s33 offen offset:1024 lds
    {"s_barrier" if xb else ""}""")
    if xexp:
        k("s_waitcnt vmcnt(3)"); stamp(10); k("s_waitcnt vmcnt(0)"); stamp(11)
    k("s_branch L_fft1")
    k(f"""L_ffn0:
    s_cmp_ge_u32 s2, 256
    s_cbranch_scc1 L_end
    s_sub_u32 s30, s2, 128""")
    if pf:
        k(f"""s_lshr_b32 s31, s30, 3
        s_lshl_b32 s31, s31, 13
        s_sub_u32 s32, s31, {pfc*8192}
        s_cselect_b32 s31, s31, s32
        s_cselect_b64 s[16:17], s[26:27], s[16:17]
        s_cselect_b32 s32, L_end-L_pc, s18
        v_and_b32 v4, 0x1f8, v0
        v_lshl_add_u32 v4, v4, 4, s31
        v_min_u32 v4, s32, v4
        global_load_dword v57, v4, s[16:17]""")
    if pfr: k("s_load_dwordx2 s[38:39], s[0:1], 48\nv_and_b32 v58, 0x7f0, v0\nv_lshlrev_b32 v58, 2, v58")
    k(f"""s_load_dwordx4 s[16:19], s[0:1], 56
    s_load_dwordx2 s[40:41], s[0:1], 72
    s_lshr_b32 s31, s30, 4
    s_and_b32 s32, s30, 15
    s_lshl_b32 s33, s32, 3
    s_add_u32 s33, s33, s3
    s_mul_i32 s33, s33, {8*7168}
    s_mul_i32 s34, s31, 896
    s_add_u32 s33, s33, s34
    s_and_b32 s34, s3, 3
    s_mul_i32 s34, s34, {4*GUS}
    s_lshr_b32 s35, s3, 2
    s_mul_i32 s35, s35, {32*GUS}
    s_add_u32 m0, s34, s35
    s_mov_b32 s22, 7340032
    s_mov_b32 exec_hi, 0x00ffffff
    s_waitcnt lgkmcnt(0)
    s_mov_b64 s[20:21], s[18:19]
    s_mov_b32 s18, 7340032
    s_mov_b32 s19, 0x20000
    s_load_dword s24, s[8:9], 0""")
    if pfr: k("s_cmp_lt_u32 s30, 8\ns_cbranch_scc0 L_npr\nglobal_load_dword v59, v58, s[38:39]\nL_npr:")
    if pfw: k("s_waitcnt vmcnt(0)")
    if pfw == 2: k("s_waitcnt lgkmcnt(0)")
    for i in range(8):
        k(f"buffer_load_dwordx4 v{vL16}, {S3}, s33 offen lds\ns_add_u32 m0, m0, {UPL}")
        k(f"s_nop 0\nbuffer_load_dwordx4 v{vL16}, {S4}, s33 offen lds")
        if i < 7: k(f"s_sub_u32 m0, m0, {UPL - (13 if i == 3 else 1) * GUS}\ns_add_u32 s33, s33, 7168")
    k("s_mov_b32 exec_hi, -1\ns_branch L_ffn1")

    def yb_dma():
        k(f"""s_lshl_b32 s37, s41, 15
        s_lshl_b32 s38, s3, 12
        s_add_u32 m0, s38, {YBL}
        s_add_u32 s37, s37, s38
        s_add_u32 s37, s37, {TYB}""")
        for i in range(4): k(f"buffer_load_dwordx4 v{vL16}, {S3}, s37 offen offset:{1024*i} lds")
    def xres_load():
        for q in range(4): k(f"buffer_load_dwordx4 {vr(XR+4*q,4)}, v{vOF+q}, {SX}, 0 offen")
    k("L_fft1:\ns_bfe_u32 s41, s2, 0x10003")
    if wpf: k("s_load_dwordx2 s[30:31], s[0:1], 72")
    k(f"""s_and_b32 s40, s2, 7
    s_lshr_b32 s42, s2, 4
    s_and_b32 s43, s2, 15
    v_lshrrev_b32 v19, 3, v0
    v_and_b32 v20, 7, v0
    v_lshl_add_u32 v19, v19, 4, s43
    s_lshl_b32 s44, s42, 7
    v_lshl_add_u32 v20, v20, 4, s44
    v_lshl_add_u32 v{vOF}, v19, 11, v20
    v_sub_u32 v19, 1024, v19
    v_sub_u32 v20, 2032, v20
    v_add_u32 v{vOF+2}, 0x200000, v{vOF}
    v_lshl_add_u32 v{vOF+3}, v19, 11, v20
    v_add_u32 v{vOF+1}, 0x200000, v{vOF+3}
    v_and_b32 v{vOF+1}, 0x3fffff, v{vOF+1}""")
    k(f"""v_mul_u32_u24 v{vXB}, {XRS}, v16
    v_add_u32 v{vXB}, v{vXB}, v18
    s_mov_b32 s36, {SACC}
    v_lshl_add_u32 v{vSRD}, v{vL}, 5, s36
    v_lshrrev_b32 v19, 3, v{vL}
    v_add_u32 v19, s3, v19
    v_and_b32 v20, 7, v19
    v_lshl_add_u32 v{vSA1}, v20, 2, v{vSRD}
    v_lshlrev_b32 v21, 1, v17
    v_sub_u32 v19, v19, v21
    v_add_u32 v19, 6, v19
    v_and_b32 v19, 7, v19
    v_lshlrev_b32 v19, 2, v19
    v_lshl_add_u32 v20, v16, 5, v19
    v_add_u32 v20, {SACC+48*32}, v20
    v_add_u32 v21, 2048, v{vSA1}
    s_mov_b32 s36, 0x00f0000f
    s_mov_b32 s37, 0xf0000f00
    v_cndmask_b32_e64 v{vSA2}, v21, v20, s[36:37]
    v_bfe_u32 v20, v{vL}, 2, 2
    v_and_b32 v21, 3, v{vL}
    v_lshrrev_b32 v22, 5, v{vL}
    v_lshl_add_u32 v22, v22, 3, v20
    v_and_b32 v23, 1, v17
    v_lshlrev_b32 v22, 6, v22
    v_lshl_add_u32 v22, v23, 5, v22
    v_lshl_add_u32 v22, v21, 3, v22
    v_add_u32 v{vATR}, s34, v22
    v_mov_b32 v{ON+1}, v{ON}
    v_mov_b32 v{ON+2}, v{ON}
    v_mov_b32 v{ON+3}, v{ON}
    v_mov_b32 v{vMSK}, 0xfffcfffc
    s_mov_b32 s10, {WSN}
    s_mov_b32 s14, 0x400000
    s_mov_b32 s15, 0x20000
    s_lshl_b32 s34, s3, 1
    s_add_u32 s35, s34, 17
    s_add_u32 s34, s34, 16""")
    mask64(48, 0x2222222222222222); mask64(50, 0x4444444444444444); mask64(52, 0x8888888888888888)
    k(f"""v_lshrrev_b32 v20, 1, v16
    v_lshlrev_b32 v20, 8, v20
    s_cmp_eq_u32 s2, 0
    s_cselect_b32 s36, 896, 0
    s_cselect_b32 s55, 0x10000, 0
    s_mov_b32 s54, 0xffff0000
    v_bfe_u32 v21, v{vL}, 3, 1
    v_mul_u32_u24 v21, s36, v21
    v_add_u32 v20, s2, v20
    v_sub_u32 v20, v20, v21
    v_sub_u32 v21, 0x800, v20
    v_cmp_eq_u32 vcc, 0, v20
    v_mov_b32 v22, 0x400
    s_mov_b32 s36, 0xaaaaaaaa
    s_mov_b32 s37, s36
    v_cndmask_b32_e64 v21, v21, v22, vcc
    v_cndmask_b32_e64 v20, v20, v21, s[36:37]
    v_sub_u32 v{vRK}, 0xffff, v20
    v_and_b32 v21, 15, v20
    v_and_b32 v20, 0x7f0, v20
    v_lshl_add_u32 v{vSO}, v21, 12, v20
    v_mov_b32 v21, 0x800
    v_mov_b32_dpp v{vSO}, v21 quad_perm:[0,1,2,3] row_mask:0xd bank_mask:0xf""")
    for ch in post: ld[ch]()
    nq = 2 if post.endswith('t') else 0
    stamp(16)
    k(f"s_waitcnt vmcnt({nq})")
    stamp(1)
    for u in range(4): k(f"v_mfma_f32_16x16x32_bf16 {vr(D3,4)}, {vr(WA+4*u,4)}, {vr(ON,4)}, {vr(D3,4) if u else 0}")
    k("s_waitcnt lgkmcnt(0)\ns_barrier")
    stamp(15)
    for u in range(4): k(f"ds_read_b128 {vr(XT+4*u,4)}, v{vXB} offset:{64*u}")
    for i in range(4): k(f"ds_read_b64_tr_b16 {vr(XA+2*i,2)}, v{vATR} offset:{(i//2)*1024 + (i%2)*256}")
    for q in range(2): k(f"ds_read_b128 {vr(B1P+4*q,4)}, v{vL16} offset:{LB1+1024*q}")
    if 's' in order: ld_t(False)
    k("s_add_u32 s24, s24, 1\ns_and_b32 s29, s24, 0xff")
    for u in range(4):
        k(f"s_waitcnt lgkmcnt({9-u})")
        k(f"v_mfma_f32_16x16x32_bf16 {vr(DD,4)}, {vr(XT+4*u,4)}, {vr(XT+4*u,4)}, {vr(DD,4) if u else 0}")
        k(f"v_mfma_f32_16x16x32_bf16 {vr(D1,4)}, {vr(WA+4*u,4)}, {vr(XT+4*u,4)}, {vr(D1,4) if u else 0}")
    for q in range(2, 4): k(f"ds_read_b128 {vr(B1P+4*q,4)}, v{vL16} offset:{LB1+1024*q}")
    for i in range(4): k(f"ds_read_b64_tr_b16 {vr(XB+2*i,2)}, v{vATR} offset:{XRS + (i//2)*1024 + (i%2)*256}")
    mf = []
    for (acc, X, Bm) in ((PA, XA, B1P), (MA, XA, B1M), (PB, XB, B1P), (MB, XB, B1M)):
        for u in range(2): mf.append(f"v_mfma_f32_32x32x16_bf16 {vr(acc,16)}, {vr(X+4*u,4)}, {vr(Bm+4*u,4)}, {vr(acc,16) if u else 0}")
    k(f"""v_cndmask_b32_e64 v{DD}, v{DD}, v{DD+1}, s[48:49]
    v_cndmask_b32_e64 v{DD+2}, v{DD+2}, v{DD+3}, s[52:53]
    v_mov_b32_dpp v{D1}, v{D3} quad_perm:[0,1,2,3] row_mask:0x4 bank_mask:0xf
    s_or_b64 s[50:51], s[50:51], s[52:53]
    ds_write_b32 v{vSA1}, v{D1}
    v_cndmask_b32_e64 v{DD}, v{DD}, v{DD+2}, s[50:51]
    ds_write_b32 v{vSA2}, v{DD}""")
    k(f"s_waitcnt lgkmcnt({8 if mfb <= 2 else 6})")
    for i in range(mfb): k(mf.pop(0))
    k("s_waitcnt vmcnt(0) lgkmcnt(0)\ns_barrier")
    stamp(17)
    S0 = 28
    k(f"ds_read_b128 {vr(S0,4)}, v{vSRD}\nds_read_b128 {vr(D1,4)}, v{vSRD} offset:16")
    k(f"ds_read_b128 {vr(vABb,4)}, v{vL16} offset:{LT+12*1024}\nds_read_b128 {vr(vAP,4)}, v{vL16} offset:{LT+8*1024}")
    for q in range(4): k(f"ds_read_b128 {vr(TW+4*q,4)}, v{vL16} offset:{LT+1024*q}")
    for q in range(4): k(f"ds_read_b128 {vr(B2+4*q,4)}, v{vL16} offset:{LT+4096+1024*q}")
    k(f"ds_read_b128 {vr(RA,4)}, v{vL16} offset:{LT+14*1024}\nds_read_b128 {vr(vEP,4)}, v{vL16} offset:{LT+13*1024}")
    if fastc: k("s_cmp_eq_u32 s3, 7\ns_cbranch_scc1 L_cw")
    mf7 = list(mf)
    k(mf.pop(0))
    SXW, SX_, SW_, SXX = S0, S0 + 1, S0 + 2, S0 + 3
    chain = f"""v_pk_add_f32 {vr(S0,2)}, {vr(S0,2)}, {vr(S0+2,2)}
    v_pk_add_f32 {vr(D1,2)}, {vr(D1,2)}, {vr(D1+2,2)}
    v_pk_add_f32 {vr(S0,2)}, {vr(S0,2)}, {vr(D1,2)}
    v_add_f32 v{D1}, v{S0}, v{S0+1}
    v_add_f32 v{SXX}, v{S0}, v{S0+1}
    v_permlane32_swap_b32 v{D1}, v{SXX}
    v_mov_b32 v{D1+1}, v{SXX}
    v_mul_f32 v{SX_}, {hx_(1/1024)}, v{D1}
    v_mul_f32 v{SXX}, {hx_(1/1024)}, v{SXX}
    v_fma_f32 v{SXX}, -v{SX_}, v{SX_}, v{SXX}
    v_max_f32 v{SXX}, 0, v{SXX}
    v_cvt_pk_bf16_f32 v{SXX}, v{SXX}, v{SXX}
    v_and_b32 v{SXX}, 0xffff0000, v{SXX}
    v_add_f32 v{SXX}, 0x3727c5ac, v{SXX}
    v_cvt_pk_bf16_f32 v{SXX}, v{SXX}, v{SXX}
    v_and_b32 v{SXX}, 0xffff0000, v{SXX}
    v_sqrt_f32 v{SXX}, v{SXX}
    v_mov_b32 v18, s24
    v_cvt_pk_bf16_f32 v19, v{SX_}, v{SXX}
    v_and_b32 v16, 0xffff0000, v19
    v_rcp_f32 v16, v16
    v_lshlrev_b32 v17, 16, v19
    v_mul_f32 v17, v17, v16
    v_readlane_b32 s56, v16, s34
    v_readlane_b32 s57, v16, s35
    v_readlane_b32 s58, v17, s34
    v_readlane_b32 s59, v17, s35""".split('\n')
    k("s_waitcnt lgkmcnt(12)")
    nm = len(mf)
    for i, ln in enumerate(chain):
        k(ln)
        if mf and (i + 1) * nm // len(chain) > nm - len(mf): k(mf.pop(0))
    assert not mf
    def cand_code():
        k(f"""    v_permlane16_swap_b32 v{SXW}, v{D1}
    v_permlane16_swap_b32 v{SW_}, v{D1+1}
    v_lshlrev_b32 v{SX_}, 16, v19
    v_fma_f32 v{SXW}, -v{SX_}, v{SW_}, v{SXW}
    v_mul_f32 v{SXW}, v{SXW}, v16
    v_cvt_pk_bf16_f32 v{SXW}, v{SXW}, v{SXW}
    s_lshl_b32 s37, s2, 4
    v_ashrrev_i32 v{SX_}, 31, v{SXW}
    s_add_u32 s37, s37, {CAND-32768}
    v_or_b32 v{SX_}, 0x80000000, v{SX_}
    v_xor_b32 v{SXW}, v{SXW}, v{SX_}
    v_and_b32 v{SXW}, 0xffff0000, v{SXW}
    v_or_b32 v{SXW}, v{SXW}, v{vRK}
    v_mov_b32 v{SW_}, v18
    v_lshlrev_b32 v{vRK}, 11, v{vL}
    v_min_u32_dpp v{SX_}, v{SXW}, v{SXW} row_ror:8 {FULL}
    v_max_u32_dpp v{SXW}, v{SXW}, v{SXW} row_ror:8 {FULL}""")
        for s in (4, 2, 1): top2_step(SXW, SX_, SXX, f'row_ror:{s} {FULL}')
        setexec(((1 << crep) - 1) << 16)
        k(f"""buffer_store_dwordx4 {vr(S0,4)}, v{vRK}, {SW}, s37 offen sc1
    s_mov_b64 exec, s[54:55]
    s_mov_b32 s37, {STATS}
    buffer_store_dwordx4 v[16:19], v{vSO}, {SW}, s37 offen sc1""")
        setexec(-1)
    def cand_wave():
        k("L_cw:")
        if prio: k("s_setprio 2")
        k("s_waitcnt lgkmcnt(12)")
        for ln in chain: k(ln)
        cand_code()
        if prio: k("s_setprio 0")
        for m in mf7: k(m)
        k("s_branch L_nocand")
    if not fastc:
        k("s_cmp_lg_u32 s3, 7\ns_cbranch_scc1 L_nocand")
        cand_code()
    k("L_nocand:")
    stamp(2)
    k(f"""s_mov_b32 s60, s57
    s_mov_b32 s61, s59
    s_or_b32 s62, s2, s3
    s_cselect_b32 s57, s57, 0
    s_cselect_b32 s59, s59, 0
    s_mul_i32 s36, s3, {2*RS}
    s_lshl_b32 s37, s3, 5
    s_waitcnt lgkmcnt(10)
    v_add_u32 v{vABk}, s37, v{vABk}
    v_add_u32 v{vAP}, s36, v{vAP}
    v_add_u32 v{vAN}, s36, v{vAN}
    v_add_u32 v{vF1}, s36, v{vF1}
    v_add_u32 v{vF2}, s36, v{vF2}
    v_and_b32 v{vABk}, 0xff, v{vABk}
    v_add_u32 v{vABb}, v{vABb}, v{vABk}
    L_job:
    v_mul_f32 v18, s58, v{vK0}
    v_mul_f32 v19, s59, v{vK0}
    v_add_f32 v16, v18, v19
    v_sub_f32 v17, v18, v19""")
    for g in range(8):
        t = WT + 8 * (g % 2); Wr, Wi = vr(t, 2), vr(t + 2, 2)
        u, hf = g // 2, g % 2
        c_, s_ = TW + 4 * u + hf, TW + 4 * u + 2 + hf
        k(f"""v_pk_fma_f32 {Wr}, {vr(PA+2*g,2)}, s[56:57], v[16:17] op_sel:[0,0,0] op_sel_hi:[1,0,0]
        v_pk_fma_f32 {Wi}, {vr(MA+2*g,2)}, s[56:57], v[16:17] op_sel:[0,0,1] op_sel_hi:[1,0,1]
        v_pk_fma_f32 {Wr}, {vr(MB+2*g,2)}, s[56:57], {Wr} op_sel:[0,1,0] op_sel_hi:[1,1,1]
        v_pk_fma_f32 {Wi}, {vr(PB+2*g,2)}, s[56:57], {Wi} op_sel:[0,1,0] op_sel_hi:[1,1,1] neg_lo:[1,0,0] neg_hi:[1,0,0]""")
        if hf == 0 and u > 0: k(f"v_mfma_f32_32x32x16_f16 {vr(D2,16)}, {vr(XA+4*(u-1),4)}, {vr(B2+4*(u-1),4)}, {vr(D2,16) if u > 1 else 0}")
        if g == 0: k("s_waitcnt lgkmcnt(2)")
        k(f"""v_cvt_pk_f16_f32 v{t+4}, v{t}, v{t+1}
        v_cvt_pk_f16_f32 v{t+5}, v{t+2}, v{t+3}
        v_pk_mul_f16 v{t+6}, v{t+4}, v{c_}
        v_pk_mul_f16 v{t+7}, v{t+5}, v{c_}
        v_pk_fma_f16 v{XA+4*u+hf}, v{t+5}, v{s_}, v{t+6}
        v_pk_fma_f16 v{XA+4*u+2+hf}, v{t+4}, v{s_}, v{t+7} neg_lo:[1,0,0] neg_hi:[1,0,0]""")
    k(f"v_mfma_f32_32x32x16_f16 {vr(D2,16)}, {vr(XA+12,4)}, {vr(B2+12,4)}, {vr(D2,16)}")
    k(f"""s_and_b32 s37, s24, 0x3333
    s_and_b32 s38, s24, 0xcccc
    s_lshl_b32 s38, s38, 14
    s_or_b32 s37, s37, s38
    s_and_b32 s25, s37, 0x30003
    s_lshr_b32 s38, s37, 4
    s_and_b32 s26, s38, 0x30003
    s_lshr_b32 s38, s37, 8
    s_and_b32 s27, s38, 0x30003
    s_lshr_b32 s38, s37, 12
    s_and_b32 s28, s38, 0x30003""")
    for i in range(4): k(f"v_cvt_pk_f16_f32 v{WO+i}, v{D2+2*i}, v{D2+2*i+1}")
    k(f"ds_write_b128 v{vAP}, {vr(WO,4)}")
    for i in range(4, 8): k(f"v_cvt_pk_f16_f32 v{WO+i}, v{D2+2*i}, v{D2+2*i+1}")
    k(f"""ds_write_b128 v{vAN}, {vr(WO+4,4)}
    ds_write_b16_d16_hi v{vF1}, v{WO+3}
    ds_write_b16_d16_hi v{vF2}, v{WO+7}
    s_cmp_lg_u32 s62, 0
    s_cbranch_scc0 L_job2
    L_jobx:
    s_lshl_b32 s37, s2, 14
    s_lshl_b32 s38, s3, 8
    s_add_u32 s37, s37, s38
    s_add_u32 s37, s37, {ZB}""")
    k("s_waitcnt lgkmcnt(0)\ns_barrier")
    stamp(3)
    for j in range(4):
        for v in range(2): k(f"ds_read_b64_tr_b16 {vr(XA+4*j+2*v,2)}, v{vABb} offset:{v*4*RS + (j//2)*256 + (j%2)*8}")
    k("s_cmp_lg_u32 s3, 6\ns_cbranch_scc1 L_noext0")
    for d in range(4): k(f"ds_read_u16 v{PA+d}, v{vEP} offset:{2*RS*d}\nds_read_u16 v{PA+4+d}, v{vEM} offset:{2*RS*d}")
    k(f"""s_lshl_b32 s38, s2, {9 if extl else 3}
    s_add_u32 s38, s38, {EXT}
    s_add_u32 s39, s38, {64 if extl else 8192}
    v_mov_b32 v{PA+17}, s24
    v_mov_b32 v{PA+19}, s24
    s_waitcnt lgkmcnt(0)""")
    for d in range(4): k(f"v_lshl_or_b32 v{PA+d}, v{PA+4+d}, 16, v{PA+d}")
    k(f"""v_mfma_f32_16x16x32_f16 {vr(PA+12,4)}, {vr(RA,4)}, {vr(PA,4)}, 0
    L_noext0:""")
    for j in range(4):
        k(f"s_waitcnt lgkmcnt({6-2*j})\nv_mfma_f32_16x16x32_f16 {vr(WT+4*j,4)}, {vr(RA,4)}, {vr(XA+4*j,4)}, 0")
    k(f"""s_cmp_lg_u32 s3, 6
    s_cbranch_scc1 L_noext
    v_cvt_pk_f16_f32 v{PA+16}, v{PA+12}, v{PA+13}
    v_cvt_pk_f16_f32 v{PA+18}, v{PA+14}, v{PA+15}""")
    setexec(0x00ff00ff00ff00ff)
    k(f"buffer_store_dwordx2 {vr(PA+16,2)}, v{vEX}, {SW}, s38 offen sc1\nbuffer_store_dwordx2 {vr(PA+18,2)}, v{vEX}, {SW}, s39 offen sc1")
    setexec(-1)
    k("L_noext:")
    for kk in range(2):
        for d in range(4):
            a = WT + 8 * (d % 2) + 2 * kk + d // 2
            k(f"v_cvt_pk_f16_f32 v{WO+4*kk+d}, v{a}, v{a+4}")
        if not trunc:
            for d in range(4): k(f"v_add_u32 v{WO+4*kk+d}, 0x20002, v{WO+4*kk+d}")
        for d in range(4): k(f"v_and_or_b32 v{WO+4*kk+d}, v{WO+4*kk+d}, v{vMSK}, s{25+d}")
        k(f"buffer_store_dwordx4 {vr(WO+4*kk,4)}, v{vZO}, {SW}, s37 offen offset:{2048*kk} sc1")
    stamp(4)
    if zb: k("s_barrier")
    yb_dma()
    xres_load()

    YB, RES, ZA, YA, CN, XFR, ACC, XO = 32, 64, 96, 132, 164, 176, 208, 224
    vYB, vPF = 236, 237
    vGA, vGB1, vIW, vYR, vXA, vSWr, vSR, vXO, vGB0, vBIG, TG = 4, 5, 6, 7, 8, 9, 10, 11, 24, 25, 232
    k(f"""ds_read_b128 {vr(vGA,4)}, v{vL16} offset:{LT+9*1024}
    ds_read_b128 {vr(vXA,4)}, v{vL16} offset:{LT+10*1024}
    ds_read_b64 {vr(vE0,2)}, v{vL16} offset:{LT+11*1024+8}
    v_and_b32 v{vST0}, 0x1f8, v0
    v_sub_u32 v{vST1}, {SACC+1024+504}, v{vST0}
    v_add_u32 v{vST0}, {SACC}, v{vST0}
    s_and_b32 s52, s3, 3
    s_lshl_b32 s36, s52, 13
    s_add_u32 s36, s36, {YBL}
    v_add_u32 v{vYB}, s36, v{vL16}""")
    def yb_read():
        for u in range(8): k(f"ds_read_b128 {vr(YB+4*u,4)}, v{vYB} offset:{1024*u}")
    if wpf:
        k(f"""s_min_u32 s36, s2, 111
        s_lshl_b32 s36, s36, 3
        s_add_u32 s36, s36, s3
        s_lshl_b32 s36, s36, 13
        v_lshl_add_u32 v{vPF}, v{vL}, 7, s36""")
    k(f"""s_lshl_b32 s48, s40, 11
    s_lshl_b32 s49, s42, 8
    s_add_u32 s48, s48, s49
    s_add_u32 s48, s48, {ZB}
    s_lshl_b32 s36, s3, 16
    s_sub_u32 s49, s48, s36
    s_add_u32 s48, s48, s36
    s_add_u32 s54, s48, {32*16384}
    s_add_u32 s55, s49, {61*16384}
    s_add_u32 s49, s49, {93*16384}
    s_cmp_eq_u32 s41, 0
    s_mov_b32 s50, 0xbc00bc00
    s_cmov_b32 s50, 0x3c003c00
    s_lshr_b32 s51, s3, 2
    s_cmp_eq_u32 s3, 0
    s_cselect_b32 s38, 0xffff, 0
    s_mov_b32 s39, 0
    v_mov_b32 v{TG}, s25
    v_mov_b32 v{TG+1}, s26
    v_mov_b32 v{TG+2}, s27
    v_mov_b32 v{TG+3}, s28
    v_mov_b32 v{vBIG}, 0x40000000
    s_lshl_b32 s36, s3, 10
    s_lshl_b32 s37, s51, 6
    s_waitcnt lgkmcnt(0)
    v_add_u32 v{vGB0}, 0x100000, v{vGB1}
    v_add_u32 v{vIW}, s36, v{vIW}
    v_cndmask_b32_e64 v{vGB0}, v{vGB0}, v{vGB1}, s[38:39]
    v_xor_b32 v{vYR}, s37, v{vYR}
    s_mul_i32 s36, s52, {32*SRS}
    s_lshl_b32 s37, s51, 5
    v_add_u32 v{vXO}, s36, v{vXO}
    s_add_u32 s36, s36, s37
    s_mul_i32 s37, s3, {8*SRS}
    v_add_u32 v{vSWr}, s36, v{vSWr}
    v_add_u32 v{vSR}, s37, v{vSR}""")
    def z_issue():
        k(f"""buffer_load_dwordx4 {vr(ZA,4)}, v{vGA}, {SW}, s48 offen sc1
        buffer_load_dwordx4 {vr(ZA+4,4)}, v{vGB0}, {SW}, s55 offen sc1
        buffer_load_dwordx4 {vr(ZA+8,4)}, v{vGA}, {SW}, s54 offen sc1
        buffer_load_dwordx4 {vr(ZA+12,4)}, v{vGB1}, {SW}, s49 offen sc1""")
    def z_check():
        for i in range(16): k(f"v_xor_b32 v{ZA+i}, v{TG+i%4}, v{ZA+i}")
        or_tree(range(ZA, ZA + 16), 16); k("v_and_b32 v16, 0x30003, v16\nv_cmp_ne_u32 vcc, 0, v16")
    k(f"""s_cmp_lt_u32 s3, 5
    s_cbranch_scc1 L_y0
    s_cmp_eq_u32 s3, 5
    s_cbranch_scc1 L_y01
    s_cmp_eq_u32 s3, 6
    s_cbranch_scc1 L_y00
    s_and_b32 s45, s2, {crep-1}
    s_lshl_b32 s45, s45, 11
    s_add_u32 s45, s45, {CAND}""")
    cand_top2(CN, vL16, 's63', issued='issue')
    def st_issue():
        for i in range(4): k(f"buffer_load_dwordx3 {vr(ST+4*i,3)}, v{vL16}, {SW}, s{44+i//2} offen offset:{1024*(i%2)} sc1")
    k(f"""s_branch L_y0
    L_y01:
    s_sub_u32 s45, 16, s43
    s_and_b32 s45, s45, 15
    s_cselect_b32 s37, 0, 16
    s_lshl_b32 s45, s45, 12
    s_lshl_b32 s44, s43, 12
    s_add_u32 s45, s45, s37
    s_add_u32 s44, s44, {STATS}
    s_add_u32 s45, s45, {STATS}""")
    st_issue()
    k(f"""s_branch L_y0
    L_y00:
    s_lshl_b32 s37, s40, {6 if extl else 13}
    s_lshl_b32 s38, s42, {3 if extl else 10}
    s_add_u32 s37, s37, s38
    s_add_u32 s45, s37, {EXT}""")
    e_issue = lambda: k(f"buffer_load_dwordx2 {vr(CN,2)}, v{vE0}, {SW}, s45 offen sc1\nbuffer_load_dwordx2 {vr(CN+2,2)}, v{vE1}, {SW}, s45 offen sc1")
    e_issue()
    k("L_y0:")
    z_issue()
    if wpf: k(f"global_load_dword v238, v{vPF}, s[30:31]")
    if yexp:
        stamp(10); k(f"s_waitcnt vmcnt({12+wpf})"); stamp(11)
    k("s_cmp_lg_u32 s3, 5\ns_cbranch_scc1 L_y02")
    poll(st_issue, lambda: check_word([ST + 2, ST + 6, ST + 10, ST + 14]), 's63', issued=True, vm=4 + wpf)
    k(f"v_lshlrev_b32 v16, 3, v{vL}")
    for i in range(4): k(f"v_add_f32 v{ST+4*i}, 1.0, v{ST+4*i}\nds_write_b64 v16, {vr(ST+4*i,2)} offset:{SACC+512*i}")
    k(f"L_y02:\ns_cmp_ge_u32 s3, 6\ns_cbranch_scc1 L_w7\ns_waitcnt vmcnt({4+wpf})\nL_w7:\ns_waitcnt vmcnt({6+wpf}) lgkmcnt(0)\ns_barrier")
    stamp(5)
    k(f"ds_read2_b64 {vr(ST,4)}, v{vST0} offset1:64\nds_read2_b64 {vr(ST+4,4)}, v{vST1} offset1:64")
    yb_read()
    for q in (0, 2, 3, 1):
        sq = ST + 2 * (0, 3, 1, 2)[q]
        for d in range(4):
            r = RES + 8 * q + 2 * d
            k(f"v_lshlrev_b32 v{r}, 16, v{XR+4*q+d}\nv_and_b32 v{r+1}, 0xffff0000, v{XR+4*q+d}")
            if d == 0 and q in (0, 3): k(f"s_waitcnt lgkmcnt({9 if q == 0 else 8})")
            k(f"v_pk_fma_f32 {vr(r,2)}, {vr(r,2)}, {vr(sq,2)}, {vr(sq,2)} op_sel:[0,0,1] op_sel_hi:[1,0,1] neg_lo:[0,0,1] neg_hi:[0,0,1]")
    k("s_cmp_lg_u32 s3, 7\ns_cbranch_scc1 L_y1")
    cand_top2(CN, vL16, 's63', issued=True, vm=4 + wpf)
    k(f"v_mov_b32 v16, s46\nv_mov_b32 v17, s47\nv_mov_b32 v18, 0\nds_write_b64 v18, v[16:17] offset:{TOPL}\nL_y1:")
    k("s_cmp_lg_u32 s3, 6\ns_cbranch_scc1 L_y2")
    poll(e_issue, lambda: check_word([CN + 1, CN + 3]), 's63', issued=True, vm=4 + wpf)
    k(f"""s_cmp_eq_u32 s41, 0
    s_mov_b32 s38, 0x07060100
    s_cmov_b32 s38, 0x05040100
    v_lshrrev_b32 v17, 16, v{CN}
    v_perm_b32 v16, v{CN+2}, v{CN}, s38""")
    setexec(1)
    k(f"v_mov_b32 v{CN}, v16\nv_mov_b32 v{CN+2}, v17")
    setexec(-1)
    k(f"""v_lshrrev_b32 v18, {7 if extl else 1}, v{vE0}
    v_pk_fma_f16 v{CN}, v{CN+2}, s50, v{CN} neg_hi:[0,1,0]
    ds_write_b32 v18, v{CN} offset:{XF}
    L_y2:""")
    stamp(6)
    poll(z_issue, z_check, 's63', issued=True, vm=wpf)
    stamp(7)
    k(f"s_cmp_lg_u32 s3, 0\ns_cbranch_scc1 L_y3\ns_cmp_eq_u32 s41, 0\ns_cselect_b64 s[38:39], 0, -1")
    setexec(0xffff)
    k(f"""v_cndmask_b32_e64 v16, v{ZA+4}, v{ZA+6}, s[38:39]
    v_cndmask_b32_e64 v17, v{ZA+5}, v{ZA+7}, s[38:39]
    v_mov_b32 v{ZA+4}, v{ZA+2}
    v_mov_b32 v{ZA+5}, v{ZA+3}
    v_mov_b32 v{ZA+2}, v16
    v_mov_b32 v{ZA+3}, v17
    v_mov_b32 v{ZA+6}, 0
    v_mov_b32 v{ZA+7}, 0""")
    setexec(-1)
    k("L_y3:")
    for a in range(2):
        for d in range(4):
            r = ZA + 8 * a + d
            k(f"v_pk_fma_f16 v{r}, v{r+4}, s50, v{r}" + (" neg_lo:[0,1,0] neg_hi:[0,1,0]" if d >= 2 else ""))
        k(f"ds_write_b128 v{vIW}, {vr(ZA+8*a,4)} offset:{YIMG+8192*a}")
    k("v_mov_b32 v18, 0\ns_waitcnt lgkmcnt(0)\ns_barrier")
    k(f"ds_read_b64 v[16:17], v18 offset:{TOPL}")
    def ymf(u): k(f"v_mfma_f32_32x32x16_f16 {vr(ACC,16)}, {vr(YA+4*u,4)}, {vr(YB+4*u,4)}, {vr(ACC,16) if u else 0}")
    def ytr(u):
        for v in range(2): k(f"ds_read_b64_tr_b16 {vr(YA+4*u+2*v,2)}, v{vYR} offset:{YIMG+u*2048+v*512}")
    def selprep():
        k(f"""v_readfirstlane_b32 s46, v16
        v_readfirstlane_b32 s47, v17
        s_and_b32 s46, s46, 0xffff
        s_and_b32 s47, s47, 0xffff
        s_sub_u32 s46, 0xffff, s46
        s_sub_u32 s47, 0xffff, s47""")
        for q in range(4):
            k(f"""v_lshrrev_b32 v16, 11, v{vOF+q}
            v_cmp_eq_u32 s[{52+2*q}:{53+2*q}], s46, v16
            v_cmp_eq_u32 vcc, s47, v16
            s_or_b64 s[{52+2*q}:{53+2*q}], s[{52+2*q}:{53+2*q}], vcc
            v_cndmask_b32_e64 v{20+q}, v{vOF+q}, v{vBIG}, s[{52+2*q}:{53+2*q}]""")
    def stage_out(O):
        pos = {O[j][q]: ACC + 4 * q + j for j in range(4) for q in range(4)}
        for i in range(8):
            k(f"v_cvt_pk_f16_f32 v{SOT+i}, v{pos[2*i]}, v{pos[2*i+1]}")
            if i % 4 == 3: k(f"ds_write_b128 v{vSWr}, {vr(SOT+i-3,4)} offset:{STG+4*(i-3)}")
    k("s_cmp_lg_u32 s51, 0\ns_cbranch_scc1 L_y4")
    for u in range(7): ytr(u)
    k("s_waitcnt lgkmcnt(12)"); ymf(0); ytr(7)
    for u in range(1, 8):
        k(f"s_waitcnt lgkmcnt({14-2*u})"); ymf(u)
        if u == 3: selprep()
    stage_out(OP)
    k("s_branch L_y5\nL_y4:")
    for u in range(4): ytr(u); k(f"ds_read_b128 {vr(XFR+4*u,4)}, v{vXA} offset:{XF+32*u}")
    def xo(u):
        for d in range(4):
            if u == 0: k(f"v_pk_mul_f16 v{XO+d}, v{YB+d}, v{XFR+d}")
            else: k(f"v_pk_fma_f16 v{XO+d}, v{YB+4*u+d}, v{XFR+4*u+d}, v{XO+d}")
    for u in range(8):
        k(f"s_waitcnt lgkmcnt({min(10, 22-3*u)})"); ymf(u)
        if u < 4: ytr(u + 4); k(f"ds_read_b128 {vr(XFR+16+4*u,4)}, v{vXA} offset:{XF+128+32*u}")
        if u >= 1: xo(u - 1)
        if u == 0: selprep()
    k("s_waitcnt lgkmcnt(0)")
    xo(7)
    k(f"""s_mov_b32 s37, 0x3c003c00
    v_pk_add_f16 v{XO}, v{XO}, v{XO+1}
    v_pk_add_f16 v{XO+2}, v{XO+2}, v{XO+3}
    v_dot2c_f32_f16 v18, s37, v{XO}
    v_dot2c_f32_f16 v18, s37, v{XO+2}
    v_mov_b32 v19, v18
    v_permlane32_swap_b32 v18, v19
    v_add_f32 v18, v18, v19
    v_cvt_f16_f32 v18, v18
    ds_write_b16 v{vXO}, v18 offset:{STG}""")
    stage_out(OM)
    k("L_y5:\ns_mov_b32 s37, 0x42800000\ns_or_b64 s[60:61], s[52:53], s[54:55]\ns_or_b64 s[38:39], s[56:57], s[58:59]\ns_waitcnt lgkmcnt(0)\ns_barrier")
    stamp(8)
    k(f"""ds_read_b128 {vr(ZA,4)}, v{vSR} offset:{STG}
    ds_read_u16 v{ZA+4}, v{vSR} offset:{STG+16}
    ds_read_b128 {vr(ZA+8,4)}, v{vSR} offset:{STG+64*SRS}
    ds_read_u16 v{ZA+12}, v{vSR} offset:{STG+64*SRS+16}
    s_or_b64 s[60:61], s[60:61], s[38:39]
    s_cbranch_scc1 L_sel""")
    def outq(q, sel):
        a, mir = q // 2, q % 2
        k(f"s_waitcnt lgkmcnt({3-2*a-mir})")
        for i in range(8):
            e = 8 - i if mir else i
            k(f"v_fma_mix_f32 v{RES+8*q+i}, v{ZA+8*a+e//2}, s37, v{RES+8*q+i} op_sel:[{e%2},0,0] op_sel_hi:[1,0,0]")
        if sel:
            k(f"""s_cmp_eq_u64 s[{52+2*q}:{53+2*q}], 0
            s_cbranch_scc1 L_selx{q}
            s_mov_b64 exec, s[{52+2*q}:{53+2*q}]
            v_lshrrev_b32 v16, 11, v{vOF+q}
            v_and_b32 v17, 2047, v{vOF+q}
            v_cmp_eq_u32 vcc, s47, v16
            v_lshlrev_b32 v17, 1, v17
            v_add_u32 v16, 4096, v17
            v_mov_b32 v18, 0xffffff00
            v_cndmask_b32_e64 v16, v17, v16, vcc
            s_mov_b32 s38, {SEL}""")
            for i in range(8): k(f"v_and_or_b32 v{XFR+i}, v{RES+8*q+i}, v18, s29")
            k(f"""buffer_store_dwordx4 {vr(XFR,4)}, v16, {SW}, s38 offen sc1
            buffer_store_dwordx4 {vr(XFR+4,4)}, v16, {SW}, s38 offen offset:16 sc1
            s_mov_b64 exec, -1
            L_selx{q}:""")
        for d in range(4): k(f"v_cvt_pk_bf16_f32 v{YA+4*q+d}, v{RES+8*q+2*d}, v{RES+8*q+2*d+1}")
        k(f"buffer_store_dwordx4 {vr(YA+4*q,4)}, v{20+q}, {SO}, 0 offen")
    for q in range(4): outq(q, False)
    stamp(9)
    k("s_branch L_fin\nL_sel:")
    for q in range(4): outq(q, True)
    stamp(9)
    k(f"""s_branch L_fin
    L_job2:
    s_mov_b32 s62, 1
    s_mov_b32 s56, 0
    s_mov_b32 s58, 0
    s_mov_b32 s57, s60
    s_mov_b32 s59, s61""")
    for r in (vAP, vAN, vF1, vF2): k(f"v_subrev_u32 v{r}, {2*RS}, v{r}")
    k("s_branch L_job")
    if fastc: cand_wave()

    GB, CS, AC, WB = 64, 128, 160, 224
    vT8, vM8 = 10, 9
    def wd_dma(rows, lds0, row0):
        pass
    k(f"""L_ffn1:
    s_mov_b32 s6, 0x400000
    s_mov_b32 s10, {WSN}
    s_mov_b32 s14, 0x400000
    s_mov_b32 s15, 0x20000
    s_mov_b32 s42, 7340032
    s_mov_b32 s43, 0x20000
    s_lshl_b32 s44, s30, 16
    v_mov_b32 v{vM8}, 0xffffff00
    v_bfe_u32 v16, v{vL}, 2, 4
    v_and_b32 v17, 3, v{vL}
    v_mul_u32_u24 v18, {WDS}, v16
    s_lshl_b32 s38, s3, 8
    v_lshl_add_u32 v11, v17, 3, s38
    v_add_u32 v11, v11, v18
    v_add_u32 v3, {WD0}, v11
    s_mul_i32 s37, s30, 4682
    s_lshr_b32 s37, s37, 16
    s_mul_i32 s38, s37, 14
    s_sub_u32 s38, s30, s38
    s_mul_i32 s37, s37, {16*7168}
    s_lshl_b32 s38, s38, 9
    s_add_u32 s37, s37, s38
    s_add_u32 s48, s37, {AB}
    v_lshrrev_b32 v18, 5, v0
    v_and_b32 v19, 31, v0
    v_mul_u32_u24 v18, 7168, v18
    v_lshl_add_u32 v48, v19, 4, v18
    s_mov_b32 s36, {RED}
    v_lshl_add_u32 v49, v0, 3, s36
    v_lshl_add_u32 v50, v{vL}, 3, s36
    v_lshl_add_u32 v51, v0, 1, s36
    v_and_b32 v18, 1, v{vL}
    v_and_b32 v19, 48, v{vL}
    v_lshl_add_u32 v20, v18, 6, v19
    s_lshl_b32 s38, s3, 7
    s_add_u32 s38, s38, s36
    v_add_u32 v52, s38, v20
    s_lshl_b32 s38, s30, 13
    s_lshl_b32 s39, s3, 10
    s_add_u32 s38, s38, s39
    s_add_u32 s49, s38, {BB}
    v_lshrrev_b32 v20, 3, v0
    v_and_b32 v21, 7, v0
    v_lshlrev_b32 v20, 13, v20
    v_lshl_add_u32 v53, v21, 4, v20
    s_and_b32 s52, s30, 63
    s_lshl_b32 s50, s52, 7
    s_add_u32 s50, s50, {BB}
    s_add_u32 s51, s50, {64*8192}
    v_lshl_add_u32 v54, v0, 2, s36
    v_lshl_add_u32 v55, v{vL}, 2, s36
    s_and_b32 s45, s2, {crep-1}
    s_lshl_b32 s45, s45, 11
    s_add_u32 s45, s45, {CAND}
    s_waitcnt lgkmcnt(0)
    s_add_u32 s24, s24, 1
    s_and_b32 s29, s24, 0xff
    v_mov_b32 v{vT8}, s29
    v_mov_b32 v8, 0x40000000
    v_mov_b32 v7, 0
    s_cmp_lg_u32 s3, 7
    s_cbranch_scc1 L_f1""")
    cand_top2(32, vL16, 's63', issued='issue')
    k("s_waitcnt vmcnt(2)\ns_barrier")
    stamp(1)
    cand_top2(32, vL16, 's63', issued=True, vm=0)
    stamp(2)
    k(f"""s_and_b32 s36, s46, 0xffff
    s_sub_u32 s36, 0xffff, s36
    s_and_b32 s37, s47, 0xffff
    s_sub_u32 s37, 0xffff, s37
    s_lshl_b32 s38, s36, 11
    s_lshl_b32 s39, s37, 11
    s_lshl_b32 s33, s32, 7
    s_add_u32 s38, s38, s33
    s_add_u32 s39, s39, s33
    s_mov_b32 m0, {FXS}""")
    setexec(0xff)
    k(f"""buffer_load_dwordx4 v{vL16}, {SX}, s38 offen lds
    s_mov_b32 m0, {FXS+128}
    s_and_b32 s33, s36, 15
    buffer_load_dwordx4 v{vL16}, {SX}, s39 offen lds
    s_lshl_b32 s33, s33, 12
    s_and_b32 s36, s36, 0x7f0
    s_add_u32 s36, s36, s33
    s_add_u32 s36, s36, {STATS}
    s_and_b32 s33, s37, 15
    s_lshl_b32 s33, s33, 12
    s_and_b32 s37, s37, 0x7f0
    s_add_u32 s37, s37, s33
    s_add_u32 s37, s37, {STATS}""")
    setexec(1)
    s_issue = lambda: k(f"buffer_load_dwordx3 v[40:42], off, {SW}, s36 sc1\nbuffer_load_dwordx3 v[44:46], off, {SW}, s37 sc1")
    s_issue()
    setexec(-1)
    k(f"s_cmp_ge_u32 s30, 112\ns_cbranch_scc1 L_f0\ns_mov_b32 m0, {WD0}\ns_mov_b32 s33, s44")
    for i in range(wd1):
        k(f"buffer_load_dwordx4 v{vL16}, {S5}, s33 offen lds\nbuffer_load_dwordx4 v{vL16}, {S5}, s33 offen offset:1024 lds")
        if i < 15: k(f"s_add_u32 m0, m0, {WDS}\ns_add_u32 s33, s33, {2048 * (5 if i % 4 == 3 else 1)}")
    k(f"s_waitcnt vmcnt({2*wd1})\nL_f0:")
    setexec(1)
    L = k.lab('Q')
    k(f"s_cmp_lt_u32 s30, 112\ns_cbranch_scc1 {L}\ns_waitcnt vmcnt(0)\n{L}:")
    poll(s_issue, lambda: check_word([42, 46]), 's62', issued=True, vm=63)
    k(f"""v_mov_b32 v42, v41
    v_mov_b32 v41, v44
    v_mov_b32 v43, v45
    v_mov_b32 v44, {FPAR}
    ds_write_b128 v44, v[40:43]
    s_waitcnt lgkmcnt(0)""")
    setexec(-1)
    k("s_barrier")
    stamp(3)
    k(f"""v_lshrrev_b32 v18, 5, v{vL}
    v_mov_b32 v19, s47
    v_mov_b32 v20, s46
    v_mov_b32_dpp v19, v20 quad_perm:[0,1,2,3] row_mask:0x3 bank_mask:0xf
    s_lshr_b32 s38, s52, 1
    s_lshl_b32 s38, s38, 5
    s_and_b32 s39, s52, 1
    s_lshl_b32 s39, s39, 3
    s_add_u32 s38, s38, s39
    v_and_b32 v16, 16, v{vL}
    v_add3_u32 v17, v21, v16, s38
    v_lshlrev_b32 v16, 12, v18
    v_lshl_add_u32 v7, v17, 2, v16
    v_ashrrev_i32 v16, 31, v19
    v_not_b32 v16, v16
    v_or_b32 v16, 0x80000000, v16
    v_xor_b32 v16, v16, v19
    v_and_b32 v16, 0xffff0000, v16
    v_mul_f32 v16, 0xbfb8aa3b, v16
    v_exp_f32 v16, v16
    v_and_b32 v19, 0xffff, v19
    v_add_f32 v16, 1.0, v16
    v_rcp_f32 v16, v16
    v_sub_u32 v19, 0xffff, v19
    v_lshlrev_b32 v19, 11, v19
    v_lshl_add_u32 v8, v17, 1, v19
    v_cvt_pk_bf16_f32 v16, v16, v16
    v_and_b32 v6, 0xffff0000, v16
    s_branch L_f2
    L_f1:
    v_mul_u32_u24 v16, {GUS}, v16
    s_lshl_b32 s36, s3, 7
    v_lshl_add_u32 v17, v17, 3, s36
    v_add_u32 v4, v16, v17
    v_add_u32 v5, {UPL}, v4
    v_lshl_add_u32 v6, v18, 7, v19
    v_add_u32 v6, {FXS}, v6
    v_mov_b32 v56, {FPAR}
    s_mul_i32 s36, s30, 7168
    s_lshl_b32 s37, s3, 10
    s_add_u32 s36, s36, s37
    s_add_u32 s36, s36, {AB}""")
    for i in range(4): k(f"v_mov_b32 v{12+i}, 0x3f803f80")
    k("s_waitcnt vmcnt(0)\ns_barrier")
    stamp(1)
    for T in range(4):
        for mat in range(2):
            for ks in range(2):
                r = GB + 4 * ((T * 2 + mat) * 2 + ks)
                for v in range(2): k(f"ds_read_b64_tr_b16 {vr(r+2*v,2)}, v{4+mat} offset:{(32*ks+16*v)*GUS + 32*T}")
    k("s_waitcnt lgkmcnt(0)")
    for j in range(8):
        for ks in range(2): k(f"v_mfma_f32_16x16x32_bf16 {vr(CS+4*j,4)}, v[12:15], {vr(GB+8*j+4*ks,4)}, {vr(CS+4*j,4) if ks else 0}")
    rowsel(16, [CS + 8 * mg for mg in range(4)]); rowsel(17, [CS + 8 * mg + 4 for mg in range(4)])
    k("s_barrier")
    stamp(3)
    k(f"""ds_read_b128 v[20:23], v6
    ds_read_b128 v[24:27], v6 offset:64
    ds_read_b128 v[28:31], v56
    s_waitcnt lgkmcnt(2)""")
    for j in range(8): k(f"v_mfma_f32_16x16x32_bf16 {vr(AC+4*j,4)}, v[20:23], {vr(GB+8*j,4)}, 0")
    k("s_waitcnt lgkmcnt(0)")
    for j in range(8):
        k(f"v_mfma_f32_16x16x32_bf16 {vr(AC+4*j,4)}, v[24:27], {vr(GB+8*j+4,4)}, {vr(AC+4*j,4)}")
        if j == 0: k("v_pk_mul_f32 v[32:33], v[30:31], v[16:17] op_sel:[0,0] op_sel_hi:[1,0] neg_lo:[1,0] neg_hi:[1,0]")
        if j == 1: k("v_mul_f32 v34, -v30, v17\nv_mul_f32 v35, -v31, v17")
    for i in range(4): rowsel(40 + i, [AC + 8 * mg + 4 * (i // 2) + i % 2 for mg in range(4)])
    k("v_pk_fma_f32 v[40:41], v[40:41], v[28:29], v[32:33]\nv_pk_fma_f32 v[42:43], v[42:43], v[28:29], v[34:35]")
    for i in range(4): k(f"v_and_or_b32 v{40+i}, v{40+i}, v{vM8}, v{vT8}")
    k(f"buffer_store_dwordx4 v[40:43], v{vL16}, {SW}, s36 offen sc1")
    stamp(4)
    k(f"""L_f2:
    s_cmp_ge_u32 s30, 112
    s_cbranch_scc1 L_red
    s_lshr_b32 s36, s3, 1
    s_lshl_b32 s36, s36, 3
    s_and_b32 s37, s3, 1
    s_lshl_b32 s37, s37, 1
    s_add_u32 s36, s36, s37
    s_add_u32 s36, s36, 4
    s_lshl_b32 s36, s36, 11
    s_add_u32 s33, s44, s36
    s_mul_i32 s36, s3, {2*WDS}
    s_add_u32 m0, s36, {WD1}
    s_barrier""")
    for i in range(2):
        k(f"buffer_load_dwordx4 v{vL16}, {S5}, s33 offen lds\nbuffer_load_dwordx4 v{vL16}, {S5}, s33 offen offset:1024 lds")
        if i < 1: k(f"s_add_u32 m0, m0, {WDS}\ns_add_u32 s33, s33, 2048")
    if wd1 < 16:
        assert False
    poll(lambda: k(f"buffer_load_dwordx4 v[24:27], v48, {SW}, s48 offen sc1"), lambda: check_f32([24, 25, 26, 27], 16, vT8), 's61')
    stamp(10)
    k(f"""v_permlane32_swap_b32 v24, v25
    v_permlane32_swap_b32 v26, v27
    v_add_f32 v24, v24, v25
    v_add_f32 v25, v26, v27
    ds_write_b64 v49, v[24:25] offset:{RED-RED}
    s_waitcnt lgkmcnt(0)
    s_barrier""")
    for i in range(8): k(f"ds_read_b64 {vr(32+2*i,2)}, v50 offset:{RED-RED+512*i}")
    wb = [f"ds_read_b64_tr_b16 {vr(WB+4*T+2*v,2)}, v{11 if v else 3} offset:{32*T}" for T in range(8) for v in range(2)]
    for i in range(6): k(wb.pop(0))
    for i in range(4): k(f"s_waitcnt lgkmcnt({12-2*i})\nv_pk_add_f32 {vr(32+4*i,2)}, {vr(32+4*i,2)}, {vr(34+4*i,2)}")
    k(f"""v_pk_add_f32 v[32:33], v[32:33], v[36:37]
    v_pk_add_f32 v[40:41], v[40:41], v[44:45]""")
    for i in range(7): k(wb.pop(0))
    k(f"""v_pk_add_f32 v[32:33], v[32:33], v[40:41]
    v_cvt_pk_bf16_f32 v33, v32, v33
    v_lshlrev_b32 v32, 16, v33
    v_mul_f32 v34, 0xbfb8aa3b, v32
    v_exp_f32 v34, v34
    v_and_b32 v33, 0xffff0000, v33
    v_add_f32 v34, 1.0, v34
    v_rcp_f32 v34, v34
    s_waitcnt lgkmcnt(6)""")
    for i in range(3): k(wb.pop(0))
    k(f"""v_mul_f32 v32, v32, v34
    v_cvt_pk_bf16_f32 v32, v32, v32
    v_and_b32 v32, 0xffff0000, v32
    v_mul_f32 v32, v32, v33
    v_cvt_pk_bf16_f32 v32, v32, v32
    ds_write_b16 v51, v32 offset:{HB-RED}
    ds_read_b128 v[36:39], v52 offset:{HB-RED}
    s_waitcnt lgkmcnt(0)""")
    for T in range(8): k(f"v_mfma_f32_16x16x32_bf16 {vr(64+4*T,4)}, v[36:39], {vr(WB+4*T,4)}, 0")
    for i in range(4): rowsel(40 + i, [64 + 8 * mg + 4 * (i // 2) + i % 2 for mg in range(4)])
    for i in range(4): k(f"v_and_or_b32 v{40+i}, v{40+i}, v{vM8}, v{vT8}")
    k(f"buffer_store_dwordx4 v[40:43], v{vL16}, {SW}, s49 offen sc1")
    stamp(11)
    k(f"""L_red:
    s_cmp_lt_u32 s30, 64
    s_cbranch_scc1 L_fin""")
    stamp(5)
    k("s_cmp_ge_u32 s3, 6\ns_cbranch_scc1 L_r2")
    poll(lambda: k(f"buffer_load_dwordx4 v[20:23], v53, {SW}, s50 offen sc1\nbuffer_load_dwordx4 v[24:27], v53, {SW}, s51 offen sc1"),
         lambda: check_f32(range(20, 28), 16, vT8), 's60')
    k(f"v_pk_add_f32 v[20:21], v[20:21], v[24:25]\nv_pk_add_f32 v[22:23], v[22:23], v[26:27]\ns_branch L_r3\nL_r2:\ns_mov_b32 s38, {SEL}\nv_mov_b32 v24, v{vT8}\ns_cmp_eq_u32 s3, 7\ns_cbranch_scc1 L_r4")
    poll(lambda: k(f"buffer_load_dwordx4 v[20:23], v53, {SW}, s50 offen sc1"), lambda: check_f32(range(20, 24), 16, vT8), 's60')
    k("s_branch L_r3\nL_r4:")
    poll(lambda: k(f"buffer_load_dwordx4 v[20:23], v53, {SW}, s50 offen sc1\nbuffer_load_dword v24, v7, {SW}, s38 offen sc1"), lambda: check_f32(range(20, 25), 16, vT8), 's60')
    k("L_r3:")
    stamp(6)
    k(f"""v_permlane32_swap_b32 v20, v21
    v_permlane32_swap_b32 v22, v23
    v_add_f32 v20, v20, v21
    v_add_f32 v22, v22, v23
    v_permlane16_swap_b32 v20, v22
    v_add_f32 v20, v20, v22
    v_add_f32_dpp v20, v20, v20 row_ror:8 {FULL}
    ds_write_b32 v54, v20 offset:{FRED-RED}
    s_waitcnt lgkmcnt(0)
    s_barrier
    s_cmp_lg_u32 s3, 7
    s_cbranch_scc1 L_fin""")
    for i in range(8): k(f"ds_read_b32 v{32+i}, v55 offset:{FRED-RED+256*i}")
    k(f"""s_waitcnt lgkmcnt(4)
    v_pk_add_f32 v[32:33], v[32:33], v[34:35]
    s_waitcnt lgkmcnt(0)
    v_pk_add_f32 v[36:37], v[36:37], v[38:39]
    v_pk_add_f32 v[32:33], v[32:33], v[36:37]
    v_add_f32 v20, v32, v33
    v_cvt_pk_bf16_f32 v20, v20, v20
    v_and_b32 v20, 0xffff0000, v20
    v_mul_f32 v20, v20, v6
    v_cvt_pk_bf16_f32 v20, v20, v20
    v_and_b32 v20, 0xffff0000, v20
    v_add_f32 v20, v20, v24
    v_cvt_pk_bf16_f32 v20, v20, v20""")
    setexec(0x00ff00ff00ff00ff)
    k(f"""buffer_store_short v20, v8, {SO}, 0 offen
    s_cmp_lg_u32 s52, 0
    s_cbranch_scc1 L_fin
    v_mov_b32 v16, s24""")
    setexec(1)
    k(f"buffer_store_dword v16, off, {SW}, 0 sc1")
    k("L_fin:")
    if stamps:
        stamp(12)
        k("s_waitcnt vmcnt(0)")
        stamp(13)
        k(f"""s_mov_b64 exec, -1
        s_waitcnt lgkmcnt(0)
        s_lshl_b32 s36, s2, 3
        s_add_u32 s36, s36, s3
        s_lshl_b32 s36, s36, 7
        s_add_u32 s36, s36, {STAMP}""")
        for i in range(18): k(f"v_mov_b32 v{16+i}, s{64+2*i}")
        k("v_mov_b32 v34, s63\nv_mov_b32 v35, s60\ns_mov_b64 exec, 1")
        for i in range(5): k(f"buffer_store_dwordx4 {vr(16+4*i,4)}, off, {SW}, s36 offset:{16*i}")
    k("L_end:\ns_endpgm")
    body, nn = add_nops(k.l)
    data = ".p2align 8\nL_tab:\n" + tabs.emit(com) + tabs.emit(yb) + tabs.emit(ra)
    return f"; @launch grid=(256,1,1) block=(512,1,1) lds={LDS}\n" + wrap(name, body) + data, nn

if __name__ == '__main__':
    args = eval(sys.argv[2]) if len(sys.argv) > 2 else {}
    t, nn = gen(**args)
    open(sys.argv[1], 'w').write(t)
    print('lines', t.count('\n'), 'bytes', len(t), 'nop states', nn, 'lds', LDS, LDS_FFT, FXS, RED, HB, FRED)
```

```python
import sys, os, struct
sys.path.insert(0, os.path.dirname(__file__))
from asmlib import *
import tabs
NAME = 'parallel_sum__spectral_fnet__moe_arch_mod__prompt'
EPOCH = 0; SEL = 4096; STATS = 3 << 16; EXT = 65536; CAND = 131072
ZB = 1 << 20; AB = 3 << 20; BB = 4 << 20; STAMP = 6 << 20; WSN = 8 << 20
XS = 0; XRS = 2064; RS = 1088; NEG = 528; XLOC = 1056; SRS = 144
YIMG = 0; XF = 16384; STG = 16896
LB1 = 35328; LT = LB1 + 4096; SACC = LT + 16384; SDUM = SACC + 2048; TOPL = SDUM + 2048; PL = TOPL + 64; PL0 = PL + 2 * RS
YBL = PL + 18 * RS; LDS_FFT = YBL + 32768
GUS = 928; UPL = 64 * GUS; WDS = 2080; WD1 = 0; WD0 = 128 * GUS; FXS = WD0 + 16 * WDS; FPAR = FXS + 256; RED = FPAR + 64; HB = RED + 4096; FRED = HB + 1024
LDS = max(LDS_FFT, FRED + 2048)
SX, SW, SO, S3, S4, S5 = 's[4:7]', 's[8:11]', 's[12:15]', 's[16:19]', 's[20:23]', 's[40:43]'
def fb(x): return struct.unpack('<I', struct.pack('<f', x))[0]
def hx_(x): return f'{fb(x):#x}'
def vr(a, n): return f'v[{a}:{a+n-1}]'
OP = [[1,2,3,4],[5,6,7,0],[8,9,10,11],[12,13,14,15]]
OM = [[15,14,13,12],[11,10,9,0],[8,7,6,5],[4,3,2,1]]

def gen(stamps=False, maxit=1 << 16, crep=8, trunc=0, pf=1, wd1=16, prio=1, mfb=2, pfc=2, xb=0, fastc=1, extl=1, wpa=0, wpb=6, ybp=4, pfw=1, pfr=1, order='btwx', xexp=0, yexp=0, zb=1, ntg=1, ntw=0, nto=2, ntx=0, remap=1, pm=0, pa2=0, pb2=0, red0=64, prew=14, xrp=0, tch=0, tcf=0, pl='sc1', ps='sc1', plz='sc1', psz='sc1', pwo=1, plc='sc1', cpw=2, xs=0, yo=1, self_=0, seld=0, gexp=0, fsc=1, name=NAME + '_kernel'):
    class C: pass
    c = C(); c.RS, c.NEG, c.XLOC, c.PL0, c.SRS = RS, NEG, XLOC, PL0, SRS; c.ZSC = 1.00105 if trunc else 1.0; c.extl = extl
    com, yb, ra = tabs.tables(c)
    TCOM = 4096; TYB = com.size * 4; TRA = TYB + yb.size * 4; TSZ = TRA + ra.size * 4
    k = KB()
    vPF = 3
    def wpf_at(pos):
        a, b = wpa == pos, wpb == pos
        if not (a or b): return 0
        if not b: k("s_mov_b32 exec_hi, 0")
        if not a: k("s_mov_b32 exec_lo, 0")
        k(f"global_load_dword v27, v{vPF}, s[30:31]")
        if a != b: k("s_mov_b64 exec, -1")
        return 1
    wp3 = 1 if 3 in (wpa, wpb) else 0; wpf = wp3 + (1 if 5 in (wpa, wpb) else 0); wp4 = 1 if 4 in (wpa, wpb) else 0; wp8 = 1 if 8 in (wpa, wpb) else 0; wp9 = 1 if 9 in (wpa, wpb) else 0
    NG, NW, NO, NX = [' nt' if f else '' for f in (ntg, ntw, nto, ntx)]
    NO = ['', ' nt', ' sc1', ' sc0 sc1', ' sc1 nt', ' sc0 sc1 nt'][nto]
    NONCE = "s_add_u32 s24, s24, 1\ns_and_b32 s29, s24, 0xff"
    if pwo == 4: NONCE += "\ns_cselect_b32 s28, 0, 1\ns_or_b32 s24, s24, s28\ns_or_b32 s29, s29, s28"
    def stamp(i):
        if stamps: k(f"s_memrealtime s[{64+2*i}:{65+2*i}]")
    def mask64(reg, val):
        k(f"s_mov_b32 s{reg}, {val & 0xffffffff:#x}\ns_mov_b32 s{reg+1}, {val >> 32:#x}")
    def setexec(val):
        if val == -1 or val < 64: k(f"s_mov_b64 exec, {val}")
        elif val < 1 << 31: k(f"s_mov_b64 exec, {val:#x}")
        else: k(f"s_mov_b32 exec_lo, {val & 0xffffffff:#x}\ns_mov_b32 exec_hi, {val >> 32:#x}")
    def poll(issue, check, cnt, issued=False, vm=0, masked=False):
        L = k.lab('P')
        k(f"s_mov_b32 {cnt}, 0")
        if issued: k(f"s_waitcnt vmcnt({vm})\ns_branch {L}_c")
        k(f"{L}:"); issue(); k(f"s_waitcnt vmcnt(0)\n{L}_c:"); check()
        k(f"s_and_b64 exec, exec, vcc\ns_cbranch_scc0 {L}_x" if masked else f"s_cbranch_vccz {L}_x")
        k(f"s_add_u32 {cnt}, {cnt}, 1\ns_cmp_lt_u32 {cnt}, {maxit}\ns_cbranch_scc1 {L}\n{L}_x:")
        if masked: k("s_mov_b64 exec, -1")
    def poll2(issue, n, ra, rb, check, cnt, vm):
        L = k.lab('P')
        k(f"s_mov_b32 {cnt}, 0\ns_waitcnt vmcnt({vm})\ns_branch {L}_c\n{L}:\ns_waitcnt vmcnt({n})\n{L}_c:")
        check(ra); k(f"s_and_b64 exec, exec, vcc\ns_cbranch_scc0 {L}_x"); issue(ra)
        k(f"s_waitcnt vmcnt({n})")
        check(rb); k(f"s_and_b64 exec, exec, vcc\ns_cbranch_scc0 {L}_x"); issue(rb)
        k(f"s_add_u32 {cnt}, {cnt}, 1\ns_cmp_lt_u32 {cnt}, {maxit}\ns_cbranch_scc1 {L}\n{L}_x:\ns_mov_b64 exec, -1")
    def or_tree(regs, acc):
        regs = list(regs)
        if len(regs) == 1: k(f"v_mov_b32 v{acc}, v{regs[0]}"); return
        if len(regs) == 2: k(f"v_or_b32 v{acc}, v{regs[0]}, v{regs[1]}"); return
        k(f"v_or3_b32 v{acc}, v{regs[0]}, v{regs[1]}, v{regs[2]}"); regs = regs[3:]
        while len(regs) >= 2: k(f"v_or3_b32 v{acc}, v{acc}, v{regs[0]}, v{regs[1]}"); regs = regs[2:]
        if regs: k(f"v_or_b32 v{acc}, v{acc}, v{regs[0]}")
    def check_f32(regs, acc, vt, src=None):
        for i, r in enumerate(regs): k(f"v_xor_b32 v{r}, v{vt}, v{r if src is None else src + i}")
        or_tree(regs, acc); k(f"v_and_b32 v{acc}, 0xff, v{acc}\nv_cmp_ne_u32 vcc, 0, v{acc}")
    def check_word(regs):
        k(f"v_cmp_ne_u32 vcc, s24, v{regs[0]}")
        for r in regs[1:]: k(f"v_cmp_ne_u32 s[38:39], s24, v{r}\ns_or_b64 vcc, vcc, s[38:39]")
    def top2_step(a, b, t, ctrl):
        k(f"""v_min_u32_dpp v{t}, v{a}, v{a} {ctrl}
        v_max_u32_dpp v{b}, v{b}, v{b} {ctrl}
        v_max_u32_dpp v{a}, v{a}, v{a} {ctrl}
        v_max_u32 v{b}, v{b}, v{t}""")
    FULL = 'row_mask:0xf bank_mask:0xf'
    def cand_top2(c, voff, cnt, issued=False, vm=0):
        def issue():
            k(f"buffer_load_dwordx4 {vr(c,4)}, v{voff}, {SW}, s45 offen {plc}\nbuffer_load_dwordx4 {vr(c+4,4)}, v{voff}, {SW}, s45 offen offset:1024 {plc}")
        if issued == 'issue': issue(); return
        poll(issue, lambda: check_word([c + 2, c + 6]), cnt, issued, vm)
        a, b, t = c + 2, c + 3, c + 6
        k(f"v_max_u32 v{a}, v{c}, v{c+4}\nv_min_u32 v{t}, v{c}, v{c+4}\nv_max3_u32 v{b}, v{t}, v{c+1}, v{c+5}")
        for s in (8, 4, 2, 1): top2_step(a, b, t, f'row_ror:{s} {FULL}')
        top2_step(a, b, t, 'row_bcast:15 row_mask:0xa bank_mask:0xf')
        top2_step(a, b, t, 'row_bcast:31 row_mask:0xc bank_mask:0xf')
        k(f"v_readlane_b32 s46, v{a}, 63\nv_readlane_b32 s47, v{b}, 63")
    def rowsel(dst, srcs):
        if srcs[0] != dst: k(f"v_mov_b32 v{dst}, v{srcs[0]}")
        for mg in (1, 2, 3): k(f"v_mov_b32_dpp v{dst}, v{srcs[mg]} quad_perm:[0,1,2,3] row_mask:{1<<mg:#x} bank_mask:0xf")

    vL, vL16 = 1, 2
    vATR, vXB, vSA1, vSA2, vSRD, vRK, vSO, vMSK = 4, 5, 6, 7, 8, 9, 10, 11
    vAP, vAN, vF1, vF2 = 12, 13, 14, 15
    vABb, vABk, vZO, vK0, vEP, vEM, vEX = 20, 21, 22, 23, 24, 25, 26
    WA, XT, ON, D1, DD, D3 = 32, 48, 64, 68, 72, 76
    TW, B2, B1P, B1M, D2, RA, XA, XB, WO, WT = 80, 96, 112, 120, 112, 128, 132, 140, 148, 156
    PA, MA, PB, MB, XR = 176, 192, 208, 224, 240
    ST, vST0, vST1, vE0, vE1 = 112, 228, 229, 230, 231
    SOT = 112
    vOF = 172
    stamp(0)
    k(f"""s_load_dwordx2 s[4:5], s[0:1], 0
    s_load_dwordx2 s[8:9], s[0:1], 96
    s_load_dwordx2 s[12:13], s[0:1], 80
    s_getpc_b64 s[26:27]
    L_pc:
    s_add_u32 s16, s26, L_tab@rel32@lo+4
    s_addc_u32 s17, s27, L_tab@rel32@hi+12
    v_lshrrev_b32 v3, 6, v0
    v_and_b32 v{vL}, 63, v0
    s_mov_b32 s7, 0x20000
    v_readfirstlane_b32 s3, v3
    s_mov_b32 s11, 0x20000
    s_mov_b32 s19, 0x20000
    s_mov_b32 s23, 0x20000
    v_lshlrev_b32 v{vL16}, 4, v{vL}
    s_mov_b32 s18, {TRA-128}""")
    if xs:
        k(f"""s_cmp_ge_u32 s2, 256
        s_cbranch_scc1 L_end
        s_lshr_b32 s30, s2, 3
        s_lshl_b32 s30, s30, 2
        s_and_b32 s31, s2, 3
        s_or_b32 s30, s30, s31
        s_bitcmp1_b32 s2, 2
        s_cselect_b32 s31, {'0, 128' if xs == 1 else '128, 0'}
        s_or_b32 s2, s30, s31""")
    k(f"""s_cmp_ge_u32 s2, 128
    s_cbranch_scc1 L_ffn0
    s_load_dwordx2 s[20:21], s[0:1], 48""")
    k("s_mov_b32 s47, s2")
    if remap:
        k("""s_and_b32 s30, s2, 7
        s_sub_u32 s31, 16, s30
        s_cmp_eq_u32 s30, 0
        s_cselect_b32 s31, 8, s31
        s_bitcmp1_b32 s2, 3
        s_cselect_b32 s30, s31, s30
        s_and_b32 s2, s2, 0x70
        s_or_b32 s2, s2, s30""")
    k(f"""
    s_mov_b32 s18, {TSZ}
    s_lshl_b32 s30, s3, 8
    v_and_b32 v16, 15, v{vL}
    v_lshrrev_b32 v17, 4, v{vL}
    v_cmp_eq_u32 vcc, 4, v16
    v_mov_b32 v{ON}, 0x3f803f80
    v_lshl_add_u32 v18, v17, 4, s30
    s_add_u32 s30, s30, s2
    s_cmp_eq_u32 s2, 0
    s_cselect_b32 s32, 896, 0
    v_cndmask_b32_e64 v{WA}, 0, v{ON}, vcc
    s_cmp_ge_u32 s3, 4
    s_cselect_b32 s32, s32, 0
    s_sub_u32 s30, s30, s32
    s_sub_u32 s31, 2048, s30
    s_cmp_eq_u32 s30, 0
    s_cselect_b32 s31, 1024, s31
    s_lshl_b32 s32, s30, 11
    s_lshl_b32 s33, s31, 11
    s_mul_i32 s34, s3, {2*XRS}
    s_mov_b32 s6, 0x400000
    s_mov_b32 s22, 2048""")
    def ld_t(sal=True):
        if sal: k(f"""s_lshl_b32 s46, s3, 11
        s_add_u32 s39, s46, {LT}
        s_add_u32 s46, s46, {TCOM}
        s_cmp_eq_u32 s2, 0
        s_cselect_b32 s37, 2048, 0
        s_add_u32 s37, s37, s46
        s_cmp_eq_u32 s3, 6
        s_cselect_b32 s46, s37, s46
        s_lshl_b32 s37, s2, 10
        s_add_u32 s37, s37, {TRA}
        s_cmp_eq_u32 s3, 7
        s_cselect_b32 s46, s37, s46""")
        if sal != 'only': k(f"s_mov_b32 m0, s39\nbuffer_load_dwordx4 v{vL16}, {S3}, s46 offen lds\nbuffer_load_dwordx4 v{vL16}, {S3}, s46 offen offset:1024 lds")
    def ld_b():
        k(f"""s_lshl_b32 s38, s3, 9
        s_add_u32 m0, s38, {LB1}
        s_mov_b32 exec_hi, 0
        buffer_load_dwordx4 v{vL16}, {S3}, s38 offen lds
        s_mov_b32 exec_hi, -1""")
    def ld_w():
        k("s_mov_b32 exec_lo, 0x01010101\ns_mov_b32 exec_hi, 0x01010101")
        for u in range(4): k(f"buffer_load_dwordx4 {vr(WA+4*u,4)}, v18, {S4}, 0 offen offset:{64*u}")
        k("s_mov_b64 exec, -1")
    pre, post = order.split('x')
    ld = dict(t=ld_t, b=ld_b, w=ld_w, s=lambda: ld_t('only'))
    for ch in pre:
        if ch != 'w': ld[ch]()
    for i in range(1, 16): k(f"v_mov_b32 v{WA+i}, v{WA}")
    k("s_mov_b32 m0, s34\ns_waitcnt lgkmcnt(0)")
    stamp(14)
    if 'w' in pre: ld_w()
    k(f"""buffer_load_dwordx4 v{vL16}, {SX}, s32 offen lds
    buffer_load_dwordx4 v{vL16}, {SX}, s32 offen offset:1024 lds
    s_add_u32 m0, m0, {XRS}
    s_load_dword s24, s[8:9], 0
    buffer_load_dwordx4 v{vL16}, {SX}, s33 offen lds
    buffer_load_dwordx4 v{vL16}, {SX}, s33 offen offset:1024 lds
    {"s_barrier" if xb else ""}""")
    if xexp:
        k("s_waitcnt vmcnt(3)"); stamp(10); k("s_waitcnt vmcnt(0)"); stamp(11)
    k("s_branch L_fft1")
    k(f"""L_ffn0:
    s_cmp_ge_u32 s2, 256
    s_cbranch_scc1 L_end
    s_sub_u32 s30, s2, 128""")
    if pf:
        k(f"""s_lshr_b32 s31, s30, 3
        s_lshl_b32 s31, s31, 13
        s_sub_u32 s32, s31, {pfc*8192}
        s_cselect_b32 s31, s31, s32
        s_cselect_b64 s[16:17], s[26:27], s[16:17]
        s_cselect_b32 s32, L_end-L_pc, s18
        v_and_b32 v4, 0x1f8, v0
        v_lshl_add_u32 v4, v4, 4, s31
        v_min_u32 v4, s32, v4
        global_load_dword v57, v4, s[16:17]""")
    if pfr: k("s_load_dwordx2 s[38:39], s[0:1], 48\nv_and_b32 v58, 0x7f0, v0\nv_lshlrev_b32 v58, 2, v58")
    k(f"""s_load_dwordx4 s[16:19], s[0:1], 56
    s_load_dwordx2 s[40:41], s[0:1], 72
    s_lshr_b32 s31, s30, 4
    s_and_b32 s32, s30, 15
    s_lshl_b32 s33, s32, 3
    s_add_u32 s33, s33, s3
    s_mul_i32 s33, s33, {8*7168}
    s_mul_i32 s34, s31, 896
    s_add_u32 s33, s33, s34
    s_and_b32 s34, s3, 3
    s_mul_i32 s34, s34, {4*GUS}
    s_lshr_b32 s35, s3, 2
    s_mul_i32 s35, s35, {32*GUS}
    s_add_u32 m0, s34, s35
    s_mov_b32 s22, 7340032""")
    if pwo == 4:
        k(f"""s_mov_b32 s10, {WSN}
        s_lshl_b32 s36, s3, 10
        s_mul_i32 s37, s30, 7168
        s_add_u32 s37, s37, s36
        s_add_u32 s37, s37, {AB}
        s_lshl_b32 s49, s30, 13
        s_add_u32 s49, s49, s36
        s_add_u32 s49, s49, {BB}""")
        for i in range(4): k(f"v_mov_b32 v{60+i}, 0")
    else: k("s_mov_b32 exec_hi, 0x00ffffff")
    k(f"""s_waitcnt lgkmcnt(0)
    s_mov_b64 s[20:21], s[18:19]
    s_mov_b32 s18, 7340032
    s_mov_b32 s19, 0x20000
    s_load_dword s24, s[8:9], 0""")
    if pfr: k("s_cmp_lt_u32 s30, 8\ns_cbranch_scc0 L_npr\nglobal_load_dword v59, v58, s[38:39]\nL_npr:")
    if pwo == 4:
        assert prew & 6 == 6
        k(f"""buffer_store_dwordx4 v[60:63], v{vL16}, {SW}, s49 offen {ps}
        s_cmp_eq_u32 s3, 7
        s_cbranch_scc1 L_pw7
        buffer_store_dwordx4 v[60:63], v{vL16}, {SW}, s37 offen {ps}
        s_waitcnt vmcnt({2 if pfw else 63})
        s_branch L_pw
        L_pw7:
        s_waitcnt vmcnt({1 if pfw else 63})
        L_pw:
        s_mov_b32 exec_hi, 0x00ffffff""")
    elif pfw: k("s_waitcnt vmcnt(0)")
    if pfw == 2: k("s_waitcnt lgkmcnt(0)")
    if gexp:
        k(f"""s_mov_b32 exec_hi, -1
        s_cmp_ge_u32 s30, 112
        s_cbranch_scc1 L_ffn1
        v_lshrrev_b32 v4, 2, v{vL}
        v_mul_u32_u24 v4, 7168, v4
        v_and_b32 v5, 3, v{vL}
        v_lshl_add_u32 v4, v5, 4, v4
        s_and_b32 s33, s30, 0x70
        s_and_b32 s34, s30, 7
        s_lshl_b32 s34, s34, 1
        s_add_u32 s33, s33, s34
        s_bfe_u32 s34, s30, 0x10003
        s_add_u32 s33, s33, s34
        {"s_mov_b32 s33, s30" if gexp == 2 else ""}
        s_lshl_b32 s33, s33, 6
        s_mul_i32 s34, s3, {128*7168}
        s_add_u32 s33, s33, s34
        s_lshl_b32 m0, s3, 14""")
        for i in range(8):
            k(f"buffer_load_dwordx4 v4, {S3}, s33 offen{NG} lds\ns_add_u32 m0, m0, 1024\ns_nop 0\nbuffer_load_dwordx4 v4, {S4}, s33 offen{NG} lds\ns_add_u32 m0, m0, 1024\ns_add_u32 s33, s33, {16*7168}")
        k("s_branch L_ffn1")
    for i in range(8):
        k(f"buffer_load_dwordx4 v{vL16}, {S3}, s33 offen{NG} lds\ns_add_u32 m0, m0, {UPL}")
        k(f"s_nop 0\nbuffer_load_dwordx4 v{vL16}, {S4}, s33 offen{NG} lds")
        if i < 7: k(f"s_sub_u32 m0, m0, {UPL - (13 if i == 3 else 1) * GUS}\ns_add_u32 s33, s33, 7168")
    k("s_mov_b32 exec_hi, -1\ns_branch L_ffn1")

    def yb_dma():
        k(f"""s_lshl_b32 s37, s41, 15
        s_lshl_b32 s38, s3, 12
        s_add_u32 m0, s38, {YBL}
        s_add_u32 s37, s37, s38
        s_add_u32 s37, s37, {TYB}""")
        for i in range(4): k(f"buffer_load_dwordx4 v{vL16}, {S3}, s37 offen offset:{1024*i} lds")
    def xres_load():
        for q in range(4): k(f"buffer_load_dwordx4 {vr(XR+4*q,4)}, v{vOF+q}, {SX}, 0 offen{NX}")
    k("L_fft1:\ns_bfe_u32 s41, s2, 0x10003")
    if wpa or wpb:
        k(f"""s_load_dwordx2 s[30:31], s[0:1], 72
        s_min_u32 s36, s47, 111
        s_lshl_b32 s36, s36, 16
        s_lshr_b32 s37, s3, 1
        s_lshl_b32 s37, s37, 14
        s_add_u32 s36, s36, s37
        s_and_b32 s37, s3, 1
        s_lshl_b32 s37, s37, 12
        s_add_u32 s36, s36, s37
        v_and_b32 v19, 1, v17
        v_and_b32 v20, 2, v17
        v_lshl_add_u32 v{vPF}, v16, 7, s36
        v_lshl_add_u32 v{vPF}, v19, 11, v{vPF}
        v_lshl_add_u32 v{vPF}, v20, 12, v{vPF}""")
    k(f"""s_and_b32 s40, s2, 7
    s_lshr_b32 s42, s2, 4
    s_and_b32 s43, s2, 15
    v_lshrrev_b32 v19, 3, v0
    v_and_b32 v20, 7, v0
    v_lshl_add_u32 v19, v19, 4, s43
    s_lshl_b32 s44, s42, 7
    v_lshl_add_u32 v20, v20, 4, s44
    v_lshl_add_u32 v{vOF}, v19, 11, v20
    v_sub_u32 v19, 1024, v19
    v_sub_u32 v20, 2032, v20
    v_add_u32 v{vOF+2}, 0x200000, v{vOF}
    v_lshl_add_u32 v{vOF+3}, v19, 11, v20
    v_add_u32 v{vOF+1}, 0x200000, v{vOF+3}
    v_and_b32 v{vOF+1}, 0x3fffff, v{vOF+1}""")
    k(f"""v_mul_u32_u24 v{vXB}, {XRS}, v16
    v_add_u32 v{vXB}, v{vXB}, v18
    s_mov_b32 s36, {SACC}
    v_lshl_add_u32 v{vSRD}, v{vL}, 5, s36
    v_lshrrev_b32 v19, 3, v{vL}
    v_add_u32 v19, s3, v19
    v_and_b32 v20, 7, v19
    v_lshl_add_u32 v{vSA1}, v20, 2, v{vSRD}
    v_lshlrev_b32 v21, 1, v17
    v_sub_u32 v19, v19, v21
    v_add_u32 v19, 6, v19
    v_and_b32 v19, 7, v19
    v_lshlrev_b32 v19, 2, v19
    v_lshl_add_u32 v20, v16, 5, v19
    v_add_u32 v20, {SACC+48*32}, v20
    v_add_u32 v21, 2048, v{vSA1}
    s_mov_b32 s36, 0x00f0000f
    s_mov_b32 s37, 0xf0000f00
    v_cndmask_b32_e64 v{vSA2}, v21, v20, s[36:37]
    v_bfe_u32 v20, v{vL}, 2, 2
    v_and_b32 v21, 3, v{vL}
    v_lshrrev_b32 v22, 5, v{vL}
    v_lshl_add_u32 v22, v22, 3, v20
    v_and_b32 v23, 1, v17
    v_lshlrev_b32 v22, 6, v22
    v_lshl_add_u32 v22, v23, 5, v22
    v_lshl_add_u32 v22, v21, 3, v22
    v_add_u32 v{vATR}, s34, v22
    v_mov_b32 v{ON+1}, v{ON}
    v_mov_b32 v{ON+2}, v{ON}
    v_mov_b32 v{ON+3}, v{ON}
    v_mov_b32 v{vMSK}, 0xfffcfffc
    s_mov_b32 s10, {WSN}
    s_mov_b32 s14, 0x400000
    s_mov_b32 s15, 0x20000
    s_lshl_b32 s34, s3, 1
    s_add_u32 s35, s34, 17
    s_add_u32 s34, s34, 16""")
    mask64(48, 0x2222222222222222); mask64(50, 0x4444444444444444); mask64(52, 0x8888888888888888)
    k(f"""v_lshrrev_b32 v20, 1, v16
    v_lshlrev_b32 v20, 8, v20
    s_cmp_eq_u32 s2, 0
    s_cselect_b32 s36, 896, 0
    s_cselect_b32 s55, 0x10000, 0
    s_mov_b32 s54, 0xffff0000
    v_bfe_u32 v21, v{vL}, 3, 1
    v_mul_u32_u24 v21, s36, v21
    v_add_u32 v20, s2, v20
    v_sub_u32 v20, v20, v21
    v_sub_u32 v21, 0x800, v20
    v_cmp_eq_u32 vcc, 0, v20
    v_mov_b32 v22, 0x400
    s_mov_b32 s36, 0xaaaaaaaa
    s_mov_b32 s37, s36
    v_cndmask_b32_e64 v21, v21, v22, vcc
    v_cndmask_b32_e64 v20, v20, v21, s[36:37]
    v_sub_u32 v{vRK}, 0xffff, v20
    v_and_b32 v21, 15, v20
    v_and_b32 v20, 0x7f0, v20
    v_lshl_add_u32 v{vSO}, v21, 12, v20
    v_mov_b32 v21, 0x800
    v_mov_b32_dpp v{vSO}, v21 quad_perm:[0,1,2,3] row_mask:0xd bank_mask:0xf""")
    ld['y'] = yb_dma
    for ch in post: ld[ch]()
    nq = 2 if post.endswith('t') else 0
    ny = (4 if post.endswith('y') else 0) + (4 if xrp == 1 else 0)
    if xrp == 1: xres_load()
    if tcf:
        k(f"v_lshlrev_b32 v27, {tcf}, v{vL}\ns_cmp_ge_u32 s3, 2\ns_cbranch_scc1 L_tcf")
        setexec(-1 if tcf == 16 else (1 << ((4 << 20) >> tcf)) - 1)
        k(f"s_cmp_eq_u32 s3, 0\ns_cbranch_scc1 L_tcf0\nbuffer_load_dword v27, v27, {SO}, 0 offen\ns_branch L_tcf1\nL_tcf0:\nbuffer_load_dword v27, v27, {SW}, 0 offen sc1\nL_tcf1:")
        setexec(-1)
        k(f"s_waitcnt vmcnt({ny + 1})\ns_branch L_tcf2\nL_tcf:")
    if prew & 1:
        k(f"""s_lshl_b32 s37, s2, 14
        s_lshl_b32 s38, s3, 11
        s_add_u32 s37, s37, s38
        s_add_u32 s37, s37, {ZB}
        s_waitcnt lgkmcnt(0)
        s_sub_u32 s36, -2, s24""")
        for i in range(4): k(f"v_mov_b32 v{XT+i}, s36")
        k(f"buffer_store_dwordx4 {vr(XT,4)}, v{vL16}, {SW}, s37 offen sc1\nbuffer_store_dwordx4 {vr(XT,4)}, v{vL16}, {SW}, s37 offen offset:1024 sc1")
    stamp(16)
    k(f"s_waitcnt vmcnt({nq + ny + 2 * (prew & 1)})")
    if tcf: k("L_tcf2:")
    stamp(1)
    for u in range(4): k(f"v_mfma_f32_16x16x32_bf16 {vr(D3,4)}, {vr(WA+4*u,4)}, {vr(ON,4)}, {vr(D3,4) if u else 0}")
    k("s_waitcnt lgkmcnt(0)\ns_barrier")
    stamp(15)
    def z_prew():
        k(f"""s_lshl_b32 s63, s2, 14
        s_lshl_b32 s38, s3, 8
        s_add_u32 s63, s63, s38
        s_add_u32 s63, s63, {ZB}
        s_not_b32 s38, s24""")
        for i in range(4): k(f"v_mov_b32 v{WO+i}, s38")
        for kk in range(2): k(f"buffer_store_dwordx4 {vr(WO,4)}, v{vZO}, {SW}, s63 offen offset:{2048*kk} sc1")
    if prew & 32: k(f"ds_read_b32 v{vZO}, v{vL16} offset:{LT+12*1024+8}")
    for u in range(4): k(f"ds_read_b128 {vr(XT+4*u,4)}, v{vXB} offset:{64*u}")
    for i in range(4): k(f"ds_read_b64_tr_b16 {vr(XA+2*i,2)}, v{vATR} offset:{(i//2)*1024 + (i%2)*256}")
    for q in range(2): k(f"ds_read_b128 {vr(B1P+4*q,4)}, v{vL16} offset:{LB1+1024*q}")
    if 's' in order: ld_t(False)
    wpf_at(1)
    def ab_pre():
        k(f"""s_cmp_ge_u32 s3, 2
        s_cbranch_scc1 L_abp
        s_mul_i32 s36, s2, 7168
        s_lshl_b32 s37, s3, 20
        s_add_u32 s36, s36, s37
        s_add_u32 s36, s36, {AB}
        v_lshlrev_b32 v27, 7, v{vL}
        s_mov_b32 exec_hi, 0x00ffffff
        buffer_load_dword v27, v27, {SW}, s36 offen sc1
        s_mov_b32 exec_hi, -1
        L_abp:""")
    if prew & 64: ab_pre()
    if xrp == 2: xres_load()
    k(NONCE)
    for u in range(4):
        k(f"s_waitcnt lgkmcnt({9-u})")
        if u == 1 and prew & 32: z_prew()
        k(f"v_mfma_f32_16x16x32_bf16 {vr(DD,4)}, {vr(XT+4*u,4)}, {vr(XT+4*u,4)}, {vr(DD,4) if u else 0}")
        k(f"v_mfma_f32_16x16x32_bf16 {vr(D1,4)}, {vr(WA+4*u,4)}, {vr(XT+4*u,4)}, {vr(D1,4) if u else 0}")
    for q in range(2, 4): k(f"ds_read_b128 {vr(B1P+4*q,4)}, v{vL16} offset:{LB1+1024*q}")
    for i in range(4): k(f"ds_read_b64_tr_b16 {vr(XB+2*i,2)}, v{vATR} offset:{XRS + (i//2)*1024 + (i%2)*256}")
    mf = []
    for (acc, X, Bm) in ((PA, XA, B1P), (MA, XA, B1M), (PB, XB, B1P), (MB, XB, B1M)):
        for u in range(2): mf.append(f"v_mfma_f32_32x32x16_bf16 {vr(acc,16)}, {vr(X+4*u,4)}, {vr(Bm+4*u,4)}, {vr(acc,16) if u else 0}")
    k(f"""v_cndmask_b32_e64 v{DD}, v{DD}, v{DD+1}, s[48:49]
    v_cndmask_b32_e64 v{DD+2}, v{DD+2}, v{DD+3}, s[52:53]
    v_mov_b32_dpp v{D1}, v{D3} quad_perm:[0,1,2,3] row_mask:0x4 bank_mask:0xf
    s_or_b64 s[50:51], s[50:51], s[52:53]
    ds_write_b32 v{vSA1}, v{D1}
    v_cndmask_b32_e64 v{DD}, v{DD}, v{DD+2}, s[50:51]
    ds_write_b32 v{vSA2}, v{DD}""")
    k(f"s_waitcnt lgkmcnt({8 if mfb <= 2 else 6})")
    for i in range(mfb): k(mf.pop(0))
    k(("s_waitcnt vmcnt(0) lgkmcnt(0)" if nq or 's' in order or prew & 1 else "s_waitcnt lgkmcnt(0)") + "\ns_barrier")
    assert not ((nq or 's' in order) and 1 in (wpa, wpb))
    stamp(17)
    S0 = 28
    k(f"ds_read_b128 {vr(S0,4)}, v{vSRD}\nds_read_b128 {vr(D1,4)}, v{vSRD} offset:16")
    k(f"ds_read_b128 {vr(vABb,4)}, v{vL16} offset:{LT+12*1024}\nds_read_b128 {vr(vAP,4)}, v{vL16} offset:{LT+8*1024}")
    for q in range(4): k(f"ds_read_b128 {vr(TW+4*q,4)}, v{vL16} offset:{LT+1024*q}")
    for q in range(4): k(f"ds_read_b128 {vr(B2+4*q,4)}, v{vL16} offset:{LT+4096+1024*q}")
    k(f"ds_read_b128 {vr(RA,4)}, v{vL16} offset:{LT+14*1024}\nds_read_b128 {vr(vEP,4)}, v{vL16} offset:{LT+13*1024}")
    if fastc: k("s_cmp_eq_u32 s3, 7\ns_cbranch_scc1 L_cw")
    if xrp == 3: xres_load()
    mf7 = list(mf)
    k(mf.pop(0))
    SXW, SX_, SW_, SXX = S0, S0 + 1, S0 + 2, S0 + 3
    chain = f"""v_pk_add_f32 {vr(S0,2)}, {vr(S0,2)}, {vr(S0+2,2)}
    v_pk_add_f32 {vr(D1,2)}, {vr(D1,2)}, {vr(D1+2,2)}
    v_pk_add_f32 {vr(S0,2)}, {vr(S0,2)}, {vr(D1,2)}
    v_add_f32 v{D1}, v{S0}, v{S0+1}
    v_add_f32 v{SXX}, v{S0}, v{S0+1}
    v_permlane32_swap_b32 v{D1}, v{SXX}
    v_mov_b32 v{D1+1}, v{SXX}
    v_mul_f32 v{SX_}, {hx_(1/1024)}, v{D1}
    v_mul_f32 v{SXX}, {hx_(1/1024)}, v{SXX}
    v_fma_f32 v{SXX}, -v{SX_}, v{SX_}, v{SXX}
    v_max_f32 v{SXX}, 0, v{SXX}
    v_cvt_pk_bf16_f32 v{SXX}, v{SXX}, v{SXX}
    v_and_b32 v{SXX}, 0xffff0000, v{SXX}
    v_add_f32 v{SXX}, 0x3727c5ac, v{SXX}
    v_cvt_pk_bf16_f32 v{SXX}, v{SXX}, v{SXX}
    v_and_b32 v{SXX}, 0xffff0000, v{SXX}
    v_sqrt_f32 v{SXX}, v{SXX}
    v_mov_b32 v18, s24
    v_cvt_pk_bf16_f32 v19, v{SX_}, v{SXX}
    v_and_b32 v16, 0xffff0000, v19
    v_rcp_f32 v16, v16
    v_lshlrev_b32 v17, 16, v19
    v_mul_f32 v17, v17, v16
    v_readlane_b32 s56, v16, s34
    v_readlane_b32 s57, v16, s35
    v_readlane_b32 s58, v17, s34
    v_readlane_b32 s59, v17, s35""".split('\n')
    k("s_waitcnt lgkmcnt(12)")
    nm = len(mf)
    for i, ln in enumerate(chain):
        k(ln)
        if mf and (i + 1) * nm // len(chain) > nm - len(mf): k(mf.pop(0))
    assert not mf
    def cand_code():
        k(f"""    v_permlane16_swap_b32 v{SXW}, v{D1}
    v_permlane16_swap_b32 v{SW_}, v{D1+1}
    v_lshlrev_b32 v{SX_}, 16, v19
    v_fma_f32 v{SXW}, -v{SX_}, v{SW_}, v{SXW}
    v_mul_f32 v{SXW}, v{SXW}, v16
    v_cvt_pk_bf16_f32 v{SXW}, v{SXW}, v{SXW}
    s_lshl_b32 s37, s2, 4
    v_ashrrev_i32 v{SX_}, 31, v{SXW}
    s_add_u32 s37, s37, {CAND-32768}
    v_or_b32 v{SX_}, 0x80000000, v{SX_}
    v_xor_b32 v{SXW}, v{SXW}, v{SX_}
    v_and_b32 v{SXW}, 0xffff0000, v{SXW}
    v_or_b32 v{SXW}, v{SXW}, v{vRK}
    v_mov_b32 v{SW_}, v18
    v_lshlrev_b32 v{vRK}, 11, v{vL}
    v_min_u32_dpp v{SX_}, v{SXW}, v{SXW} row_ror:8 {FULL}
    v_max_u32_dpp v{SXW}, v{SXW}, v{SXW} row_ror:8 {FULL}""")
        for s in (4, 2, 1): top2_step(SXW, SX_, SXX, f'row_ror:{s} {FULL}')
        setexec(((1 << crep) - 1) << 16)
        k(f"""buffer_store_dwordx4 {vr(S0,4)}, v{vRK}, {SW}, s37 offen sc1
    s_mov_b64 exec, s[54:55]
    s_mov_b32 s37, {STATS}
    buffer_store_dwordx4 v[16:19], v{vSO}, {SW}, s37 offen sc1""")
        setexec(-1)
    def cand_wave():
        k("L_cw:")
        if prio: k("s_setprio 2")
        k("s_waitcnt lgkmcnt(12)")
        for ln in chain: k(ln)
        cand_code()
        if xrp == 3: xres_load()
        if prio: k("s_setprio 0")
        for m in mf7: k(m)
        k("s_branch L_nocand")
    if not fastc:
        k("s_cmp_lg_u32 s3, 7\ns_cbranch_scc1 L_nocand")
        cand_code()
    k("L_nocand:")
    stamp(2)
    wpf_at(2)
    if prew & 128: ab_pre()
    if xrp == 4: xres_load()
    if ybp:
        k(f"""s_lshl_b32 s63, s41, 15
        s_lshl_b32 s38, s3, 13
        s_add_u32 m0, s38, {YBL}
        s_add_u32 s63, s63, s38
        s_add_u32 s63, s63, {TYB}""")
    k(f"""s_mov_b32 s60, s57
    s_mov_b32 s61, s59
    s_or_b32 s62, s2, s3
    s_cselect_b32 s57, s57, 0
    s_cselect_b32 s59, s59, 0
    s_mul_i32 s36, s3, {2*RS}
    s_lshl_b32 s37, s3, 5
    s_waitcnt lgkmcnt(10)
    v_add_u32 v{vABk}, s37, v{vABk}
    v_add_u32 v{vAP}, s36, v{vAP}
    v_add_u32 v{vAN}, s36, v{vAN}
    v_add_u32 v{vF1}, s36, v{vF1}
    v_add_u32 v{vF2}, s36, v{vF2}
    v_and_b32 v{vABk}, 0xff, v{vABk}
    v_add_u32 v{vABb}, v{vABb}, v{vABk}""")
    if prew & 16: z_prew()
    k(f"""L_job:
    v_mul_f32 v18, s58, v{vK0}
    v_mul_f32 v19, s59, v{vK0}
    v_add_f32 v16, v18, v19
    v_sub_f32 v17, v18, v19""")
    for g in range(8):
        t = WT + 8 * (g % 2); Wr, Wi = vr(t, 2), vr(t + 2, 2)
        u, hf = g // 2, g % 2
        c_, s_ = TW + 4 * u + hf, TW + 4 * u + 2 + hf
        k(f"""v_pk_fma_f32 {Wr}, {vr(PA+2*g,2)}, s[56:57], v[16:17] op_sel:[0,0,0] op_sel_hi:[1,0,0]
        v_pk_fma_f32 {Wi}, {vr(MA+2*g,2)}, s[56:57], v[16:17] op_sel:[0,0,1] op_sel_hi:[1,0,1]
        v_pk_fma_f32 {Wr}, {vr(MB+2*g,2)}, s[56:57], {Wr} op_sel:[0,1,0] op_sel_hi:[1,1,1]
        v_pk_fma_f32 {Wi}, {vr(PB+2*g,2)}, s[56:57], {Wi} op_sel:[0,1,0] op_sel_hi:[1,1,1] neg_lo:[1,0,0] neg_hi:[1,0,0]""")
        if hf == 0 and u > 0: k(f"v_mfma_f32_32x32x16_f16 {vr(D2,16)}, {vr(XA+4*(u-1),4)}, {vr(B2+4*(u-1),4)}, {vr(D2,16) if u > 1 else 0}")
        if g == 0: k("s_waitcnt lgkmcnt(2)")
        if ybp and ybp <= g < ybp + 4:
            i = g - ybp
            k(f"s_cmp_ge_u32 s3, 4\ns_cbranch_scc1 L_yb{i}")
            if i == 2: k("s_add_u32 m0, m0, 4096\ns_add_u32 s63, s63, 4096")
            for j in range(2): k(f"buffer_load_dwordx4 v{vL16}, {S3}, s63 offen offset:{1024*(2*(i%2)+j)} lds")
            if i == 3: k("s_sub_u32 m0, m0, 4096\ns_sub_u32 s63, s63, 4096")
            k(f"L_yb{i}:")
        k(f"""v_cvt_pk_f16_f32 v{t+4}, v{t}, v{t+1}
        v_cvt_pk_f16_f32 v{t+5}, v{t+2}, v{t+3}
        v_pk_mul_f16 v{t+6}, v{t+4}, v{c_}
        v_pk_mul_f16 v{t+7}, v{t+5}, v{c_}
        v_pk_fma_f16 v{XA+4*u+hf}, v{t+5}, v{s_}, v{t+6}
        v_pk_fma_f16 v{XA+4*u+2+hf}, v{t+4}, v{s_}, v{t+7} neg_lo:[1,0,0] neg_hi:[1,0,0]""")
    k(f"v_mfma_f32_32x32x16_f16 {vr(D2,16)}, {vr(XA+12,4)}, {vr(B2+12,4)}, {vr(D2,16)}")
    k(f"""s_and_b32 s37, s24, 0x3333
    s_and_b32 s38, s24, 0xcccc
    s_lshl_b32 s38, s38, 14
    s_or_b32 s37, s37, s38
    s_and_b32 s25, s37, 0x30003
    s_lshr_b32 s38, s37, 4
    s_and_b32 s26, s38, 0x30003
    s_lshr_b32 s38, s37, 8
    s_and_b32 s27, s38, 0x30003
    s_lshr_b32 s38, s37, 12
    s_and_b32 s28, s38, 0x30003""")
    for i in range(4): k(f"v_cvt_pk_f16_f32 v{WO+i}, v{D2+2*i}, v{D2+2*i+1}")
    k(f"ds_write_b128 v{vAP}, {vr(WO,4)}")
    for i in range(4, 8): k(f"v_cvt_pk_f16_f32 v{WO+i}, v{D2+2*i}, v{D2+2*i+1}")
    k(f"""ds_write_b128 v{vAN}, {vr(WO+4,4)}
    ds_write_b16_d16_hi v{vF1}, v{WO+3}
    ds_write_b16_d16_hi v{vF2}, v{WO+7}
    s_cmp_lg_u32 s62, 0
    s_cbranch_scc0 L_job2
    L_jobx:
    s_lshl_b32 s37, s2, 14
    s_lshl_b32 s38, s3, 8
    s_add_u32 s37, s37, s38
    s_add_u32 s37, s37, {ZB}""")
    k("s_waitcnt lgkmcnt(0)\ns_barrier")
    stamp(3)
    for j in range(4):
        for v in range(2): k(f"ds_read_b64_tr_b16 {vr(XA+4*j+2*v,2)}, v{vABb} offset:{v*4*RS + (j//2)*256 + (j%2)*8}")
    k("s_cmp_lg_u32 s3, 6\ns_cbranch_scc1 L_noext0")
    for d in range(4): k(f"ds_read_u16 v{PA+d}, v{vEP} offset:{2*RS*d}\nds_read_u16 v{PA+4+d}, v{vEM} offset:{2*RS*d}")
    k(f"""s_lshl_b32 s38, s2, {9 if extl else 3}
    s_add_u32 s38, s38, {EXT}
    s_add_u32 s39, s38, {64 if extl else 8192}
    v_mov_b32 v{PA+17}, s24
    v_mov_b32 v{PA+19}, s24
    s_waitcnt lgkmcnt(0)""")
    for d in range(4): k(f"v_lshl_or_b32 v{PA+d}, v{PA+4+d}, 16, v{PA+d}")
    k(f"""v_mfma_f32_16x16x32_f16 {vr(PA+12,4)}, {vr(RA,4)}, {vr(PA,4)}, 0
    L_noext0:""")
    for j in range(4):
        k(f"s_waitcnt lgkmcnt({6-2*j})\nv_mfma_f32_16x16x32_f16 {vr(WT+4*j,4)}, {vr(RA,4)}, {vr(XA+4*j,4)}, 0")
    k(f"""s_cmp_lg_u32 s3, 6
    s_cbranch_scc1 L_noext
    v_cvt_pk_f16_f32 v{PA+16}, v{PA+12}, v{PA+13}
    v_cvt_pk_f16_f32 v{PA+18}, v{PA+14}, v{PA+15}""")
    setexec(0x00ff00ff00ff00ff)
    k(f"buffer_store_dwordx2 {vr(PA+16,2)}, v{vEX}, {SW}, s38 offen sc1\nbuffer_store_dwordx2 {vr(PA+18,2)}, v{vEX}, {SW}, s39 offen sc1")
    setexec(-1)
    k("L_noext:")
    for kk in range(2):
        for d in range(4):
            a = WT + 8 * (d % 2) + 2 * kk + d // 2
            k(f"v_cvt_pk_f16_f32 v{WO+4*kk+d}, v{a}, v{a+4}")
        if not trunc:
            for d in range(4): k(f"v_add_u32 v{WO+4*kk+d}, 0x20002, v{WO+4*kk+d}")
        for d in range(4): k(f"v_and_or_b32 v{WO+4*kk+d}, v{WO+4*kk+d}, v{vMSK}, s{25+d}")
        k(f"buffer_store_dwordx4 {vr(WO+4*kk,4)}, v{vZO}, {SW}, s37 offen offset:{2048*kk} {psz}")
    stamp(4)
    if zb: k("s_barrier")
    wpf_at(6)
    CN = 164
    def st_issue():
        for i in range(4): k(f"buffer_load_dwordx3 {vr(ST+4*i,3)}, v{vL16}, {SW}, s{44+i//2} offen offset:{1024*(i%2)} sc1")
    if yo:
        k(f"""s_cmp_eq_u32 s3, 5
        s_cbranch_scc1 L_y01
        s_cmp_lg_u32 s3, 7
        s_cbranch_scc1 L_y03
        s_and_b32 s45, s2, {crep-1}
        s_lshl_b32 s45, s45, 11
        s_add_u32 s45, s45, {CAND}""")
        cand_top2(CN, vL16, 's63', issued='issue')
        k(f"""s_branch L_y03
        L_y01:
        s_sub_u32 s45, 16, s43
        s_and_b32 s45, s45, 15
        s_cselect_b32 s37, 0, 16
        s_lshl_b32 s45, s45, 12
        s_lshl_b32 s44, s43, 12
        s_add_u32 s45, s45, s37
        s_add_u32 s44, s44, {STATS}
        s_add_u32 s45, s45, {STATS}""")
        st_issue()
        k("L_y03:")
        assert ybp
    if not ybp and 'y' not in order: yb_dma()
    wpf_at(9)
    if not xrp: xres_load()
    wpf_at(8)

    YB, RES, ZA, YA, CN, XFR, ACC, XO = 32, 64, 96, 132, 164, 176, 208, 224
    vYB = 236
    vGA, vGB1, vIW, vYR, vXA, vSWr, vSR, vXO, vGB0, vBIG, TG = 4, 5, 6, 7, 8, 9, 10, 11, 24, 25, 232
    k(f"""ds_read_b128 {vr(vGA,4)}, v{vL16} offset:{LT+9*1024}
    ds_read_b128 {vr(vXA,4)}, v{vL16} offset:{LT+10*1024}
    ds_read_b64 {vr(vE0,2)}, v{vL16} offset:{LT+11*1024+8}
    v_and_b32 v{vST0}, 0x1f8, v0
    v_sub_u32 v{vST1}, {SACC+1024+504}, v{vST0}
    v_add_u32 v{vST0}, {SACC}, v{vST0}
    s_and_b32 s52, s3, 3
    s_lshl_b32 s36, s52, 13
    s_add_u32 s36, s36, {YBL}
    v_add_u32 v{vYB}, s36, v{vL16}""")
    def yb_read():
        for u in range(8): k(f"ds_read_b128 {vr(YB+4*u,4)}, v{vYB} offset:{1024*u}")
    k(f"""s_lshl_b32 s48, s40, 11
    s_lshl_b32 s49, s42, 8
    s_add_u32 s48, s48, s49
    s_add_u32 s48, s48, {ZB}
    s_lshl_b32 s36, s3, 16
    s_sub_u32 s49, s48, s36
    s_add_u32 s48, s48, s36
    s_add_u32 s32, s48, {32*16384}
    s_add_u32 s33, s49, {61*16384}
    s_add_u32 s49, s49, {93*16384}
    s_cmp_eq_u32 s41, 0
    s_mov_b32 s50, 0xbc00bc00
    s_cmov_b32 s50, 0x3c003c00
    s_lshr_b32 s51, s3, 2
    s_cmp_eq_u32 s3, 0
    s_cselect_b32 s38, 0xffff, 0
    s_mov_b32 s39, 0
    v_mov_b32 v{TG}, s25
    v_mov_b32 v{TG+1}, s26
    v_mov_b32 v{TG+2}, s27
    v_mov_b32 v{TG+3}, s28
    v_mov_b32 v{vBIG}, 0x40000000
    s_lshl_b32 s36, s3, 10
    s_lshl_b32 s37, s51, 6
    s_waitcnt lgkmcnt(0)
    v_add_u32 v{vGB0}, 0x100000, v{vGB1}
    v_add_u32 v{vIW}, s36, v{vIW}
    v_cndmask_b32_e64 v{vGB0}, v{vGB0}, v{vGB1}, s[38:39]
    v_xor_b32 v{vYR}, s37, v{vYR}
    s_mul_i32 s36, s52, {32*SRS}
    s_lshl_b32 s37, s51, 5
    v_add_u32 v{vXO}, s36, v{vXO}
    s_add_u32 s36, s36, s37
    s_mul_i32 s37, s3, {8*SRS}
    v_add_u32 v{vSWr}, s36, v{vSWr}
    v_add_u32 v{vSR}, s37, v{vSR}""")
    def z_issue():
        k(f"""buffer_load_dwordx4 {vr(ZA,4)}, v{vGA}, {SW}, s48 offen {plz}
        buffer_load_dwordx4 {vr(ZA+4,4)}, v{vGB0}, {SW}, s33 offen {plz}
        buffer_load_dwordx4 {vr(ZA+8,4)}, v{vGA}, {SW}, s32 offen {plz}
        buffer_load_dwordx4 {vr(ZA+12,4)}, v{vGB1}, {SW}, s49 offen {plz}""")
    def z_check():
        for i in range(16): k(f"v_xor_b32 v{ZA+i}, v{TG+i%4}, v{ZA+i}")
        or_tree(range(ZA, ZA + 16), 16); k("v_and_b32 v16, 0x30003, v16\nv_cmp_ne_u32 vcc, 0, v16")
    def selprep():
        k(f"""v_readfirstlane_b32 s46, v16
        v_readfirstlane_b32 s47, v17
        s_and_b32 s46, s46, 0xffff
        s_and_b32 s47, s47, 0xffff
        s_sub_u32 s46, 0xffff, s46
        s_sub_u32 s47, 0xffff, s47""")
        for q in range(4):
            k(f"""v_lshrrev_b32 v16, 11, v{vOF+q}
            v_cmp_eq_u32 s[{52+2*q}:{53+2*q}], s46, v16
            v_cmp_eq_u32 vcc, s47, v16
            s_or_b64 s[{52+2*q}:{53+2*q}], s[{52+2*q}:{53+2*q}], vcc
            v_cndmask_b32_e64 v{20+q}, v{vOF+q}, v{vBIG}, s[{52+2*q}:{53+2*q}]""")
    if yo:
        assert not xrp and not yexp and not ({4, 5} & {wpa, wpb})
        e_issue = lambda: k(f"buffer_load_dwordx2 {vr(CN,2)}, v{vE0}, {SW}, s45 offen sc1\nbuffer_load_dwordx2 {vr(CN+2,2)}, v{vE1}, {SW}, s45 offen sc1")
        k("s_cmp_lg_u32 s3, 5\ns_cbranch_scc1 L_y02")
        poll(st_issue, lambda: check_word([ST + 2, ST + 6, ST + 10, ST + 14]), 's63', issued=True, vm=4 + wp8 + wp9)
        k(f"v_lshlrev_b32 v16, 3, v{vL}")
        for i in range(4): k(f"v_add_f32 v{ST+4*i}, 1.0, v{ST+4*i}\nds_write_b64 v16, {vr(ST+4*i,2)} offset:{SACC+512*i}")
        k("L_y02:\ns_cmp_lg_u32 s3, 7\ns_cbranch_scc1 L_y1")
        cand_top2(CN, vL16, 's63', issued=True, vm=4 + wp8 + wp9)
        k(f"v_mov_b32 v16, s46\nv_mov_b32 v17, s47\nv_mov_b32 v18, 0\nds_write_b64 v18, v[16:17] offset:{TOPL}\nL_y1:")
        k(f"""s_lshl_b32 s37, s40, {6 if extl else 13}
        s_lshl_b32 s38, s42, {3 if extl else 10}
        s_add_u32 s37, s37, s38
        s_add_u32 s45, s37, {EXT}
        v_mov_b32 v18, 0
        s_waitcnt vmcnt({6+wp8+wp9}) lgkmcnt(0)
        s_barrier""")
        stamp(5)
        wpf_at(7)
        k("s_cmp_lg_u32 s3, 6\ns_cbranch_scc1 L_y0")
        e_issue()
        k("L_y0:")
        z_issue()
        wpf_at(3)
        k(f"ds_read_b64 v[16:17], v18 offset:{TOPL}\nds_read2_b64 {vr(ST,4)}, v{vST0} offset1:64\nds_read2_b64 {vr(ST+4,4)}, v{vST1} offset1:64")
        yb_read()
        k("s_waitcnt lgkmcnt(10)")
        selprep()
        k(f"s_waitcnt vmcnt({4+wp3+wp8})")
    else:
        k(f"""s_cmp_lt_u32 s3, 5
        s_cbranch_scc1 L_y0
        s_cmp_eq_u32 s3, 5
        s_cbranch_scc1 L_y01
        s_cmp_eq_u32 s3, 6
        s_cbranch_scc1 L_y00
        s_and_b32 s45, s2, {crep-1}
        s_lshl_b32 s45, s45, 11
        s_add_u32 s45, s45, {CAND}""")
        cand_top2(CN, vL16, 's63', issued='issue')
        def st_issue():
            for i in range(4): k(f"buffer_load_dwordx3 {vr(ST+4*i,3)}, v{vL16}, {SW}, s{44+i//2} offen offset:{1024*(i%2)} sc1")
        k(f"""s_branch L_y0
        L_y01:
        s_sub_u32 s45, 16, s43
        s_and_b32 s45, s45, 15
        s_cselect_b32 s37, 0, 16
        s_lshl_b32 s45, s45, 12
        s_lshl_b32 s44, s43, 12
        s_add_u32 s45, s45, s37
        s_add_u32 s44, s44, {STATS}
        s_add_u32 s45, s45, {STATS}""")
        st_issue()
        k(f"""s_branch L_y0
        L_y00:
        s_lshl_b32 s37, s40, {6 if extl else 13}
        s_lshl_b32 s38, s42, {3 if extl else 10}
        s_add_u32 s37, s37, s38
        s_add_u32 s45, s37, {EXT}""")
        e_issue = lambda: k(f"buffer_load_dwordx2 {vr(CN,2)}, v{vE0}, {SW}, s45 offen sc1\nbuffer_load_dwordx2 {vr(CN+2,2)}, v{vE1}, {SW}, s45 offen sc1")
        e_issue()
        k("L_y0:")
        wpf_at(5)
        z_issue()
        wpf_at(3)
        if yexp:
            stamp(10); k(f"s_waitcnt vmcnt({12+wpf})"); stamp(11)
        k("s_cmp_lg_u32 s3, 5\ns_cbranch_scc1 L_y02")
        poll(st_issue, lambda: check_word([ST + 2, ST + 6, ST + 10, ST + 14]), 's63', issued=True, vm=4 + wpf)
        k(f"v_lshlrev_b32 v16, 3, v{vL}")
        for i in range(4): k(f"v_add_f32 v{ST+4*i}, 1.0, v{ST+4*i}\nds_write_b64 v16, {vr(ST+4*i,2)} offset:{SACC+512*i}")
        k(f"L_y02:\ns_cmp_ge_u32 s3, 6\ns_cbranch_scc1 L_w7\ns_waitcnt vmcnt({4+wpf})\nL_w7:\ns_waitcnt vmcnt({6+wpf}) lgkmcnt(0)\ns_barrier")
        stamp(5)
        wpf_at(4)
        k(f"ds_read2_b64 {vr(ST,4)}, v{vST0} offset1:64\nds_read2_b64 {vr(ST+4,4)}, v{vST1} offset1:64")
        yb_read()
    for q in (0, 2, 3, 1):
        sq = ST + 2 * (0, 3, 1, 2)[q]
        for d in range(4):
            r = RES + 8 * q + 2 * d
            k(f"v_lshlrev_b32 v{r}, 16, v{XR+4*q+d}\nv_and_b32 v{r+1}, 0xffff0000, v{XR+4*q+d}")
            if d == 0 and q in (0, 3): k(f"s_waitcnt lgkmcnt({9 if q == 0 else 8})")
            k(f"v_pk_fma_f32 {vr(r,2)}, {vr(r,2)}, {vr(sq,2)}, {vr(sq,2)} op_sel:[0,0,1] op_sel_hi:[1,0,1] neg_lo:[0,0,1] neg_hi:[0,0,1]")
    if not yo:
        k("s_cmp_lg_u32 s3, 7\ns_cbranch_scc1 L_y1")
        cand_top2(CN, vL16, 's63', issued=True, vm=4 + wpf + wp4)
        k(f"v_mov_b32 v16, s46\nv_mov_b32 v17, s47\nv_mov_b32 v18, 0\nds_write_b64 v18, v[16:17] offset:{TOPL}\nL_y1:")
    k("s_cmp_lg_u32 s3, 6\ns_cbranch_scc1 L_y2")
    poll(e_issue, lambda: check_word([CN + 1, CN + 3]), 's63', issued=True, vm=4 + wpf + wp4)
    k(f"""s_cmp_eq_u32 s41, 0
    s_mov_b32 s38, 0x07060100
    s_cmov_b32 s38, 0x05040100
    v_lshrrev_b32 v17, 16, v{CN}
    v_perm_b32 v16, v{CN+2}, v{CN}, s38""")
    setexec(1)
    k(f"v_mov_b32 v{CN}, v16\nv_mov_b32 v{CN+2}, v17")
    setexec(-1)
    k(f"""v_lshrrev_b32 v18, {7 if extl else 1}, v{vE0}
    v_pk_fma_f16 v{CN}, v{CN+2}, s50, v{CN} neg_hi:[0,1,0]
    ds_write_b32 v18, v{CN} offset:{XF}
    L_y2:""")
    stamp(6)
    poll(z_issue, z_check, 's63', issued=True, vm=wp3 + wp4, masked=pm & 1)
    stamp(7)
    k(f"s_cmp_lg_u32 s3, 0\ns_cbranch_scc1 L_y3\ns_cmp_eq_u32 s41, 0\ns_cselect_b64 s[38:39], 0, -1")
    setexec(0xffff)
    k(f"""v_cndmask_b32_e64 v16, v{ZA+4}, v{ZA+6}, s[38:39]
    v_cndmask_b32_e64 v17, v{ZA+5}, v{ZA+7}, s[38:39]
    v_mov_b32 v{ZA+4}, v{ZA+2}
    v_mov_b32 v{ZA+5}, v{ZA+3}
    v_mov_b32 v{ZA+2}, v16
    v_mov_b32 v{ZA+3}, v17
    v_mov_b32 v{ZA+6}, 0
    v_mov_b32 v{ZA+7}, 0""")
    setexec(-1)
    k("L_y3:")
    for a in range(2):
        for d in range(4):
            r = ZA + 8 * a + d
            k(f"v_pk_fma_f16 v{r}, v{r+4}, s50, v{r}" + (" neg_lo:[0,1,0] neg_hi:[0,1,0]" if d >= 2 else ""))
        k(f"ds_write_b128 v{vIW}, {vr(ZA+8*a,4)} offset:{YIMG+8192*a}")
    k("v_mov_b32 v18, 0\ns_waitcnt lgkmcnt(0)\ns_barrier")
    if not yo: k(f"ds_read_b64 v[16:17], v18 offset:{TOPL}")
    def ymf(u): k(f"v_mfma_f32_32x32x16_f16 {vr(ACC,16)}, {vr(YA+4*u,4)}, {vr(YB+4*u,4)}, {vr(ACC,16) if u else 0}")
    def ytr(u):
        for v in range(2): k(f"ds_read_b64_tr_b16 {vr(YA+4*u+2*v,2)}, v{vYR} offset:{YIMG+u*2048+v*512}")
    def stage_out(O):
        pos = {O[j][q]: ACC + 4 * q + j for j in range(4) for q in range(4)}
        for i in range(8):
            k(f"v_cvt_pk_f16_f32 v{SOT+i}, v{pos[2*i]}, v{pos[2*i+1]}")
            if i % 4 == 3: k(f"ds_write_b128 v{vSWr}, {vr(SOT+i-3,4)} offset:{STG+4*(i-3)}")
    k("s_cmp_lg_u32 s51, 0\ns_cbranch_scc1 L_y4")
    for u in range(7): ytr(u)
    k("s_waitcnt lgkmcnt(12)"); ymf(0); ytr(7)
    for u in range(1, 8):
        k(f"s_waitcnt lgkmcnt({14-2*u})"); ymf(u)
        if u == 3 and not yo: selprep()
    stage_out(OP)
    k("s_branch L_y5\nL_y4:")
    for u in range(4): ytr(u); k(f"ds_read_b128 {vr(XFR+4*u,4)}, v{vXA} offset:{XF+32*u}")
    def xo(u):
        for d in range(4):
            if u == 0: k(f"v_pk_mul_f16 v{XO+d}, v{YB+d}, v{XFR+d}")
            else: k(f"v_pk_fma_f16 v{XO+d}, v{YB+4*u+d}, v{XFR+4*u+d}, v{XO+d}")
    for u in range(8):
        k(f"s_waitcnt lgkmcnt({min(10, 22-3*u)})"); ymf(u)
        if u < 4: ytr(u + 4); k(f"ds_read_b128 {vr(XFR+16+4*u,4)}, v{vXA} offset:{XF+128+32*u}")
        if u >= 1: xo(u - 1)
        if u == 0 and not yo: selprep()
    k("s_waitcnt lgkmcnt(0)")
    xo(7)
    k(f"""s_mov_b32 s37, 0x3c003c00
    v_pk_add_f16 v{XO}, v{XO}, v{XO+1}
    v_pk_add_f16 v{XO+2}, v{XO+2}, v{XO+3}
    v_dot2c_f32_f16 v18, s37, v{XO}
    v_dot2c_f32_f16 v18, s37, v{XO+2}
    v_mov_b32 v19, v18
    v_permlane32_swap_b32 v18, v19
    v_add_f32 v18, v18, v19
    v_cvt_f16_f32 v18, v18
    ds_write_b16 v{vXO}, v18 offset:{STG}""")
    stage_out(OM)
    k("L_y5:\ns_mov_b32 s37, 0x42800000\ns_or_b64 s[60:61], s[52:53], s[54:55]\ns_or_b64 s[38:39], s[56:57], s[58:59]\ns_waitcnt lgkmcnt(0)\ns_barrier")
    stamp(8)
    k(f"""ds_read_b128 {vr(ZA,4)}, v{vSR} offset:{STG}
    ds_read_u16 v{ZA+4}, v{vSR} offset:{STG+16}
    ds_read_b128 {vr(ZA+8,4)}, v{vSR} offset:{STG+64*SRS}
    ds_read_u16 v{ZA+12}, v{vSR} offset:{STG+64*SRS+16}
    s_or_b64 s[60:61], s[60:61], s[38:39]
    s_cbranch_scc1 L_sel""")
    def mixq(q):
        a, mir = q // 2, q % 2
        for i in range(8):
            e = 8 - i if mir else i
            k(f"v_fma_mix_f32 v{RES+8*q+i}, v{ZA+8*a+e//2}, s37, v{RES+8*q+i} op_sel:[{e%2},0,0] op_sel_hi:[1,0,0]")
    def selq(q, mix):
        k(f"s_cmp_eq_u64 s[{52+2*q}:{53+2*q}], 0\ns_cbranch_scc1 L_selx{q}")
        if mix: mixq(q)
        k(f"""s_mov_b64 exec, s[{52+2*q}:{53+2*q}]
        v_lshrrev_b32 v16, 11, v{vOF+q}
        v_and_b32 v17, 2047, v{vOF+q}
        v_cmp_eq_u32 vcc, s47, v16
        v_lshlrev_b32 v17, 1, v17
        v_add_u32 v16, 4096, v17
        v_mov_b32 v18, 0xffffff00
        v_cndmask_b32_e64 v16, v17, v16, vcc
        s_mov_b32 s38, {SEL}""")
        for i in range(8): k(f"v_and_or_b32 v{XFR+i}, v{RES+8*q+i}, v18, s29")
        k(f"""buffer_store_dwordx4 {vr(XFR,4)}, v16, {SW}, s38 offen sc1
        buffer_store_dwordx4 {vr(XFR+4,4)}, v16, {SW}, s38 offen offset:16 sc1
        s_mov_b64 exec, -1
        L_selx{q}:""")
    def outq(q, sel):
        a, mir = q // 2, q % 2
        if sel and self_:
            k(f"s_cmp_lg_u64 s[{52+2*q}:{53+2*q}], 0\ns_cbranch_scc1 L_selm{q}"); mixq(q); k(f"L_selm{q}:")
        else:
            k(f"s_waitcnt lgkmcnt({3-2*a-mir})"); mixq(q)
            if sel: selq(q, False)
        for d in range(4): k(f"v_cvt_pk_bf16_f32 v{YA+4*q+d}, v{RES+8*q+2*d}, v{RES+8*q+2*d+1}")
        k(f"buffer_store_dwordx4 {vr(YA+4*q,4)}, v{20+q}, {SO}, 0 offen{NO}")
    for q in range(4): outq(q, False)
    stamp(9)
    k("s_branch L_fin\nL_sel:")
    if self_:
        k("s_setprio 2\ns_waitcnt lgkmcnt(0)")
        for q in range(4): selq(q, True)
        k("s_setprio 0")
    for q in range(4): outq(q, True)
    stamp(9)
    k(f"""s_branch L_fin
    L_job2:
    s_mov_b32 s62, 1
    s_mov_b32 s56, 0
    s_mov_b32 s58, 0
    s_mov_b32 s57, s60
    s_mov_b32 s59, s61""")
    for r in (vAP, vAN, vF1, vF2): k(f"v_subrev_u32 v{r}, {2*RS}, v{r}")
    k("s_branch L_job")
    if fastc: cand_wave()

    GB, CS, AC, WB = 64, 128, 160, 224
    vT8, vM8 = 10, 9
    def wd_dma(rows, lds0, row0):
        pass
    k(f"""L_ffn1:
    s_mov_b32 s6, 0x400000
    s_mov_b32 s10, {WSN}
    s_mov_b32 s14, 0x400000
    s_mov_b32 s15, 0x20000
    s_mov_b32 s42, 7340032
    s_mov_b32 s43, 0x20000
    s_lshl_b32 s44, s30, 16
    v_mov_b32 v{vM8}, 0xffffff00
    v_bfe_u32 v16, v{vL}, 2, 4
    v_and_b32 v17, 3, v{vL}
    v_mul_u32_u24 v18, {WDS}, v16
    s_lshl_b32 s38, s3, 8
    v_lshl_add_u32 v11, v17, 3, s38
    v_add_u32 v11, v11, v18
    v_add_u32 v3, {WD0}, v11
    s_mul_i32 s37, s30, 4682
    s_lshr_b32 s37, s37, 16
    s_mul_i32 s38, s37, 14
    s_sub_u32 s38, s30, s38
    s_mul_i32 s37, s37, {16*7168}
    s_lshl_b32 s38, s38, 9
    s_add_u32 s37, s37, s38
    s_add_u32 s48, s37, {AB}
    v_lshrrev_b32 v18, 5, v0
    v_and_b32 v19, 31, v0
    v_mul_u32_u24 v18, 7168, v18
    v_lshl_add_u32 v48, v19, 4, v18
    s_mov_b32 s36, {RED}
    v_lshl_add_u32 v49, v0, 3, s36
    v_lshl_add_u32 v50, v{vL}, 3, s36
    v_lshl_add_u32 v51, v0, 1, s36
    v_and_b32 v18, 1, v{vL}
    v_and_b32 v19, 48, v{vL}
    v_lshl_add_u32 v20, v18, 6, v19
    s_lshl_b32 s38, s3, 7
    s_add_u32 s38, s38, s36
    v_add_u32 v52, s38, v20
    s_lshl_b32 s38, s30, 13
    s_lshl_b32 s39, s3, 10
    s_add_u32 s38, s38, s39
    s_add_u32 s49, s38, {BB}
    v_lshrrev_b32 v20, 3, v0
    v_and_b32 v21, 7, v0
    v_lshlrev_b32 v20, 13, v20
    v_lshl_add_u32 v53, v21, 4, v20
    s_and_b32 s52, s30, 63
    s_lshl_b32 s50, s52, 7
    s_add_u32 s50, s50, {BB}
    s_add_u32 s51, s50, {64*8192}
    s_mov_b32 s53, {SEL}
    v_lshl_add_u32 v54, v0, 2, s36
    v_lshl_add_u32 v55, v{vL}, 2, s36
    s_and_b32 s45, s2, {crep-1}
    s_lshl_b32 s45, s45, 11
    s_add_u32 s45, s45, {CAND}
    s_waitcnt lgkmcnt(0)
    {NONCE}
    v_mov_b32 v{vT8}, s29
    v_mov_b32 v8, 0x40000000
    v_mov_b32 v7, 0""")
    if prew & 6 and pwo < 4:
        k("s_not_b32 s36, s24")
        for i in range(4): k(f"v_mov_b32 v{60+i}, s36")
    bpw = f"buffer_store_dwordx4 v[60:63], v{vL16}, {SW}, s49 offen {ps}"
    if prew & 4 and not pwo: k(f"s_cmp_ge_u32 s30, 112\ns_cbranch_scc1 L_pw\n{bpw}\nL_pw:")
    k("s_cmp_lg_u32 s3, 7\ns_cbranch_scc1 L_f1")
    if cpw < 16: k(f"s_waitcnt vmcnt({cpw})")
    if pwo: cand_top2(32, vL16, 's63', issued='issue')
    if prew & 4 and pwo == 1: k(bpw)
    if prew & 8: k(f"s_and_b32 s36, s52, 62\ns_lshl_b32 s36, s36, 6\ns_add_u32 s36, s36, s53\nbuffer_load_dword v59, off, {SW}, s36 sc1\ns_add_u32 s36, s36, 4096\nbuffer_load_dword v59, off, {SW}, s36 sc1")
    if not pwo: cand_top2(32, vL16, 's63', issued='issue')
    n7 = ((prew >> 2 & 1) * (pwo == 1) + 2 * (prew >> 3 & 1)) if pwo else 0
    k(f"s_waitcnt vmcnt({2 + n7})\ns_barrier")
    stamp(1)
    cand_top2(32, vL16, 's63', issued=True, vm=n7)
    stamp(2)
    k(f"""s_and_b32 s36, s46, 0xffff
    s_sub_u32 s36, 0xffff, s36
    s_and_b32 s37, s47, 0xffff
    s_sub_u32 s37, 0xffff, s37
    s_lshl_b32 s38, s36, 11
    s_lshl_b32 s39, s37, 11
    s_lshl_b32 s33, s32, 7
    s_add_u32 s38, s38, s33
    s_add_u32 s39, s39, s33
    s_mov_b32 m0, {FXS}""")
    setexec(0xff)
    k(f"""buffer_load_dwordx4 v{vL16}, {SX}, s38 offen lds
    s_mov_b32 m0, {FXS+128}
    s_and_b32 s33, s36, 15
    buffer_load_dwordx4 v{vL16}, {SX}, s39 offen lds
    s_lshl_b32 s33, s33, 12
    s_and_b32 s36, s36, 0x7f0
    s_add_u32 s36, s36, s33
    s_add_u32 s36, s36, {STATS}
    s_and_b32 s33, s37, 15
    s_lshl_b32 s33, s33, 12
    s_and_b32 s37, s37, 0x7f0
    s_add_u32 s37, s37, s33
    s_add_u32 s37, s37, {STATS}""")
    setexec(1)
    s_issue = lambda: k(f"buffer_load_dwordx3 v[40:42], off, {SW}, s36 sc1\nbuffer_load_dwordx3 v[44:46], off, {SW}, s37 sc1")
    s_issue()
    setexec(-1)
    k(f"s_cmp_ge_u32 s30, 112\ns_cbranch_scc1 L_f0\ns_mov_b32 m0, {WD0}\ns_mov_b32 s33, s44")
    for i in range(wd1):
        k(f"buffer_load_dwordx4 v{vL16}, {S5}, s33 offen{NW} lds\nbuffer_load_dwordx4 v{vL16}, {S5}, s33 offen offset:1024{NW} lds")
        if i < 15: k(f"s_add_u32 m0, m0, {WDS}\ns_add_u32 s33, s33, {2048 * (5 if i % 4 == 3 else 1)}")
    k(f"s_waitcnt vmcnt({2*wd1})\nL_f0:")
    setexec(1)
    L = k.lab('Q')
    k(f"s_cmp_lt_u32 s30, 112\ns_cbranch_scc1 {L}\ns_waitcnt vmcnt(0)\n{L}:")
    poll(s_issue, lambda: check_word([42, 46]), 's62', issued=True, vm=63)
    k(f"""v_mov_b32 v42, v41
    v_mov_b32 v41, v44
    v_mov_b32 v43, v45
    v_mov_b32 v44, {FPAR}
    ds_write_b128 v44, v[40:43]
    s_waitcnt lgkmcnt(0)""")
    setexec(-1)
    k("s_barrier")
    stamp(3)
    if prew & 4 and pwo in (2, 3): k(bpw)
    k(f"""v_lshrrev_b32 v18, 5, v{vL}
    v_mov_b32 v19, s47
    v_mov_b32 v20, s46
    v_mov_b32_dpp v19, v20 quad_perm:[0,1,2,3] row_mask:0x3 bank_mask:0xf
    s_lshr_b32 s38, s52, 1
    s_lshl_b32 s38, s38, 5
    s_and_b32 s39, s52, 1
    s_lshl_b32 s39, s39, 3
    s_add_u32 s38, s38, s39
    v_and_b32 v16, 16, v{vL}
    v_add3_u32 v17, v21, v16, s38
    v_lshlrev_b32 v16, 12, v18
    v_lshl_add_u32 v7, v17, 2, v16
    v_ashrrev_i32 v16, 31, v19
    v_not_b32 v16, v16
    v_or_b32 v16, 0x80000000, v16
    v_xor_b32 v16, v16, v19
    v_and_b32 v16, 0xffff0000, v16
    v_mul_f32 v16, 0xbfb8aa3b, v16
    v_exp_f32 v16, v16
    v_and_b32 v19, 0xffff, v19
    v_add_f32 v16, 1.0, v16
    v_rcp_f32 v16, v16
    v_sub_u32 v19, 0xffff, v19
    v_lshlrev_b32 v19, 11, v19
    v_lshl_add_u32 v8, v17, 1, v19
    v_cvt_pk_bf16_f32 v16, v16, v16
    v_and_b32 v6, 0xffff0000, v16
    s_branch L_f2
    L_f1:
    v_mul_u32_u24 v16, {GUS}, v16
    s_lshl_b32 s36, s3, 7
    v_lshl_add_u32 v17, v17, 3, s36
    v_add_u32 v4, v16, v17
    v_add_u32 v5, {UPL}, v4
    v_lshl_add_u32 v6, v18, 7, v19
    v_add_u32 v6, {FXS}, v6
    v_mov_b32 v56, {FPAR}
    s_mul_i32 s36, s30, 7168
    s_lshl_b32 s37, s3, 10
    s_add_u32 s36, s36, s37
    s_add_u32 s36, s36, {AB}""")
    apw = f"buffer_store_dwordx4 v[60:63], v{vL16}, {SW}, s36 offen {ps}"
    if prew & 2 and pwo < 2: k(apw)
    if prew & 4 and pwo == 1: k(bpw)
    for i in range(4): k(f"v_mov_b32 v{12+i}, 0x3f803f80")
    k(f"s_waitcnt vmcnt({((prew >> 1 & 1) + (prew >> 2 & 1)) if pwo == 1 else 0})\ns_barrier")
    stamp(1)
    if prew & 2 and pwo in (2, 3): k(apw)
    if prew & 4 and pwo == 3: k(bpw)
    for T in range(4):
        for mat in range(2):
            for ks in range(2):
                r = GB + 4 * ((T * 2 + mat) * 2 + ks)
                for v in range(2): k(f"ds_read_b64_tr_b16 {vr(r+2*v,2)}, v{4+mat} offset:{(32*ks+16*v)*GUS + 32*T}")
    k("s_waitcnt lgkmcnt(0)")
    for j in range(8):
        for ks in range(2): k(f"v_mfma_f32_16x16x32_bf16 {vr(CS+4*j,4)}, v[12:15], {vr(GB+8*j+4*ks,4)}, {vr(CS+4*j,4) if ks else 0}")
    rowsel(16, [CS + 8 * mg for mg in range(4)]); rowsel(17, [CS + 8 * mg + 4 for mg in range(4)])
    k("s_barrier")
    stamp(3)
    k(f"""ds_read_b128 v[20:23], v6
    ds_read_b128 v[24:27], v6 offset:64
    ds_read_b128 v[28:31], v56
    {bpw if prew & 4 and pwo == 2 else ""}
    s_waitcnt lgkmcnt(2)""")
    for j in range(8): k(f"v_mfma_f32_16x16x32_bf16 {vr(AC+4*j,4)}, v[20:23], {vr(GB+8*j,4)}, 0")
    k("s_waitcnt lgkmcnt(0)")
    for j in range(8):
        k(f"v_mfma_f32_16x16x32_bf16 {vr(AC+4*j,4)}, v[24:27], {vr(GB+8*j+4,4)}, {vr(AC+4*j,4)}")
        if j == 0: k("v_pk_mul_f32 v[32:33], v[30:31], v[16:17] op_sel:[0,0] op_sel_hi:[1,0] neg_lo:[1,0] neg_hi:[1,0]")
        if j == 1: k("v_mul_f32 v34, -v30, v17\nv_mul_f32 v35, -v31, v17")
    for i in range(4): rowsel(40 + i, [AC + 8 * mg + 4 * (i // 2) + i % 2 for mg in range(4)])
    k("v_pk_fma_f32 v[40:41], v[40:41], v[28:29], v[32:33]\nv_pk_fma_f32 v[42:43], v[42:43], v[28:29], v[34:35]")
    for i in range(4): k(f"v_and_or_b32 v{40+i}, v{40+i}, v{vM8}, v{vT8}")
    k(f"buffer_store_dwordx4 v[40:43], v{vL16}, {SW}, s36 offen {ps}")
    stamp(4)
    k(f"""L_f2:
    s_cmp_ge_u32 s30, 112
    s_cbranch_scc1 L_red""")
    a_issue = lambda r: k(f"buffer_load_dwordx4 {vr(r,4)}, v48, {SW}, s48 offen {pl}")
    if pa2: a_issue(128)
    k(f"""s_lshr_b32 s36, s3, 1
    s_lshl_b32 s36, s36, 3
    s_and_b32 s37, s3, 1
    s_lshl_b32 s37, s37, 1
    s_add_u32 s36, s36, s37
    s_add_u32 s36, s36, 4
    s_lshl_b32 s36, s36, 11
    s_add_u32 s33, s44, s36
    s_mul_i32 s36, s3, {2*WDS}
    s_add_u32 m0, s36, {WD1}
    s_barrier""")
    for i in range(2):
        k(f"buffer_load_dwordx4 v{vL16}, {S5}, s33 offen{NW} lds\nbuffer_load_dwordx4 v{vL16}, {S5}, s33 offen offset:1024{NW} lds")
        if i < 1: k(f"s_add_u32 m0, m0, {WDS}\ns_add_u32 s33, s33, 2048")
    if wd1 < 16:
        assert False
    if pa2:
        a_issue(132)
        poll2(a_issue, 1, 128, 132, lambda r: check_f32([24, 25, 26, 27], 16, vT8, r), 's61', 5)
    else: poll(lambda: a_issue(24), lambda: check_f32([24, 25, 26, 27], 16, vT8), 's61', masked=pm & 2)
    stamp(10)
    k(f"""v_permlane32_swap_b32 v24, v25
    v_permlane32_swap_b32 v26, v27
    v_add_f32 v24, v24, v25
    v_add_f32 v25, v26, v27
    ds_write_b64 v49, v[24:25] offset:{RED-RED}
    s_waitcnt vmcnt({1 if pa2 else 0}) lgkmcnt(0)
    s_barrier""")
    b0 = lambda r: k(f"buffer_load_dwordx4 {vr(r,4)}, v53, {SW}, s50 offen {pl}")
    b1 = lambda r: (b0(r), k(f"buffer_load_dwordx4 {vr(r+4,4)}, v53, {SW}, s51 offen {pl}"))
    b7 = lambda r: (b0(r), k(f"buffer_load_dword v{r+4}, v7, {SW}, s53 offen {pl}"))
    def b_early():
        assert red0 == 48
        k(f"s_cmp_lt_u32 s30, {red0}\ns_cbranch_scc1 L_be\ns_cmp_ge_u32 s3, 6\ns_cbranch_scc1 L_be6"); b1(136)
        k("s_branch L_be\nL_be6:\ns_cmp_eq_u32 s3, 7\ns_cbranch_scc1 L_be7"); b0(136)
        k("s_branch L_be\nL_be7:"); b7(136); k("L_be:")
    if pb2 == 1: b_early()
    for i in range(8): k(f"ds_read_b64 {vr(32+2*i,2)}, v50 offset:{RED-RED+512*i}")
    wb = [f"ds_read_b64_tr_b16 {vr(WB+4*T+2*v,2)}, v{11 if v else 3} offset:{32*T}" for T in range(8) for v in range(2)]
    for i in range(6): k(wb.pop(0))
    for i in range(4): k(f"s_waitcnt lgkmcnt({12-2*i})\nv_pk_add_f32 {vr(32+4*i,2)}, {vr(32+4*i,2)}, {vr(34+4*i,2)}")
    k(f"""v_pk_add_f32 v[32:33], v[32:33], v[36:37]
    v_pk_add_f32 v[40:41], v[40:41], v[44:45]""")
    for i in range(7): k(wb.pop(0))
    if pb2 == 2: b_early()
    k(f"""v_pk_add_f32 v[32:33], v[32:33], v[40:41]
    v_cvt_pk_bf16_f32 v33, v32, v33
    v_lshlrev_b32 v32, 16, v33
    v_mul_f32 v34, 0xbfb8aa3b, v32
    v_exp_f32 v34, v34
    v_and_b32 v33, 0xffff0000, v33
    v_add_f32 v34, 1.0, v34
    v_rcp_f32 v34, v34
    s_waitcnt lgkmcnt(6)""")
    for i in range(3): k(wb.pop(0))
    k(f"""v_mul_f32 v32, v32, v34
    v_cvt_pk_bf16_f32 v32, v32, v32
    v_and_b32 v32, 0xffff0000, v32
    v_mul_f32 v32, v32, v33
    v_cvt_pk_bf16_f32 v32, v32, v32
    ds_write_b16 v51, v32 offset:{HB-RED}
    ds_read_b128 v[36:39], v52 offset:{HB-RED}
    s_waitcnt lgkmcnt(0)""")
    for T in range(8): k(f"v_mfma_f32_16x16x32_bf16 {vr(64+4*T,4)}, v[36:39], {vr(WB+4*T,4)}, 0")
    for i in range(4): rowsel(40 + i, [64 + 8 * mg + 4 * (i // 2) + i % 2 for mg in range(4)])
    for i in range(4): k(f"v_and_or_b32 v{40+i}, v{40+i}, v{vM8}, v{vT8}")
    k(f"buffer_store_dwordx4 v[40:43], v{vL16}, {SW}, s49 offen {ps}")
    stamp(11)
    k(f"""L_red:
    s_sub_u32 s36, s30, {red0}
    s_cmp_ge_u32 s36, 64
    s_cbranch_scc1 L_fin""")
    stamp(5)
    def b_poll(issue, n, nr):
        if pb2:
            issue(144); poll2(issue, n, 136, 144, lambda r: check_f32(range(20, 20 + nr), 16, vT8, r), 's60', n + 1)
        else: poll(lambda: issue(20), lambda: check_f32(range(20, 20 + nr), 16, vT8), 's60', masked=pm & 4)
    k("s_cmp_ge_u32 s3, 6\ns_cbranch_scc1 L_r2")
    b_poll(b1, 2, 8)
    k(f"v_pk_add_f32 v[20:21], v[20:21], v[24:25]\nv_pk_add_f32 v[22:23], v[22:23], v[26:27]\ns_branch L_r3\nL_r2:\ns_cmp_eq_u32 s3, 7\ns_cbranch_scc1 L_r4")
    b_poll(b0, 1, 4)
    k("s_branch L_r3\nL_r4:")
    s_chk = lambda: k(f"v_xor_b32 v25, v{vT8}, v24\nv_and_b32 v16, 0xff, v25\nv_cmp_ne_u32 vcc, 0, v16")
    s_iss = lambda: k(f"buffer_load_dword v24, v7, {SW}, s53 offen {pl}")
    if seld:
        b_poll(b7, 2, 4); s_chk()
        k("s_mov_b64 s[54:55], vcc\ns_cbranch_vccz L_r3"); s_iss()
    else: b_poll(b7, 2, 5)
    k("L_r3:")
    stamp(6)
    k(f"""v_permlane32_swap_b32 v20, v21
    v_permlane32_swap_b32 v22, v23
    v_add_f32 v20, v20, v21
    v_add_f32 v22, v22, v23
    v_permlane16_swap_b32 v20, v22
    v_add_f32 v20, v20, v22
    v_add_f32_dpp v20, v20, v20 row_ror:8 {FULL}
    ds_write_b32 v54, v20 offset:{FRED-RED}
    s_waitcnt lgkmcnt(0)
    s_barrier
    s_cmp_lg_u32 s3, 7
    s_cbranch_scc1 L_fin""")
    for i in range(8): k(f"ds_read_b32 v{32+i}, v55 offset:{FRED-RED+256*i}")
    k(f"""s_waitcnt lgkmcnt(4)
    v_pk_add_f32 v[32:33], v[32:33], v[34:35]
    s_waitcnt lgkmcnt(0)
    v_pk_add_f32 v[36:37], v[36:37], v[38:39]
    v_pk_add_f32 v[32:33], v[32:33], v[36:37]
    v_add_f32 v20, v32, v33
    v_cvt_pk_bf16_f32 v20, v20, v20
    v_and_b32 v20, 0xffff0000, v20
    v_mul_f32 v20, v20, v6
    v_cvt_pk_bf16_f32 v20, v20, v20
    v_and_b32 v20, 0xffff0000, v20""")
    if seld:
        k("s_cmp_eq_u64 s[54:55], 0\ns_cbranch_scc1 L_r5")
        poll(s_iss, s_chk, 's60', issued=True, vm=0)
        k("L_r5:")
    k(f"""v_add_f32 v20, v20, v{25 if seld else 24}
    v_cvt_pk_bf16_f32 v20, v20, v20""")
    setexec(0x00ff00ff00ff00ff)
    k(f"""buffer_store_short v20, v8, {SO}, 0 offen{" sc1" if fsc else ""}
    s_cmp_lg_u32 s52, 0
    s_cbranch_scc1 L_fin
    v_mov_b32 v16, s24""")
    setexec(1)
    k(f"buffer_store_dword v16, off, {SW}, 0 sc1")
    k("L_fin:")
    if stamps:
        stamp(12)
        k("s_waitcnt vmcnt(0)")
        stamp(13)
        k(f"""s_mov_b64 exec, -1
        s_waitcnt lgkmcnt(0)
        s_lshl_b32 s36, s2, 3
        s_add_u32 s36, s36, s3
        s_lshl_b32 s36, s36, 7
        s_add_u32 s36, s36, {STAMP}""")
        for i in range(18): k(f"v_mov_b32 v{16+i}, s{64+2*i}")
        k("v_mov_b32 v34, s63\nv_mov_b32 v35, s60\ns_mov_b64 exec, 1")
        for i in range(5): k(f"buffer_store_dwordx4 {vr(16+4*i,4)}, off, {SW}, s36 offset:{16*i}")
    k("L_end:\ns_endpgm")
    body, nn = add_nops(k.l)
    data = ".p2align 8\nL_tab:\n" + tabs.emit(com) + tabs.emit(yb) + tabs.emit(ra)
    return f"; @launch grid=(256,1,1) block=(512,1,1) lds={LDS}\n" + wrap(name, body) + data, nn

if __name__ == '__main__':
    args = eval(sys.argv[2]) if len(sys.argv) > 2 else {}
    t, nn = gen(**args)
    open(sys.argv[1], 'w').write(t)
    print('lines', t.count('\n'), 'bytes', len(t), 'nop states', nn, 'lds', LDS, LDS_FFT, FXS, RED, HB, FRED)
```

```python
import sys, os, struct
sys.path.insert(0, os.path.dirname(__file__))
from asmlib import *
import tabs
NAME = 'parallel_sum__spectral_fnet__moe_arch_mod__prompt'
EPOCH = 0; SEL = 4096; STATS = 3 << 16; EXT = 65536; CAND = 131072
ZB = 1 << 20; AB = 3 << 20; BB = 4 << 20; STAMP = 6 << 20; WSN = 8 << 20
XS = 0; XRS = 2064; RS = 1088; NEG = 528; XLOC = 1056; SRS = 144
YIMG = 0; XF = 16384; STG = 16896
LB1 = 35328; LT = LB1 + 4096; SACC = LT + 16384; SDUM = SACC + 2048; TOPL = SDUM + 2048; PL = TOPL + 64; PL0 = PL + 2 * RS
YBL = PL + 18 * RS; LDS_FFT = YBL + 32768
GUS = 928; UPL = 64 * GUS; WDS = 2080; WD1 = 0; WD0 = 128 * GUS; FXS = WD0 + 16 * WDS; FPAR = FXS + 256; RED = FPAR + 64; HB = RED + 4096; FRED = HB + 1024
LDS = max(LDS_FFT, FRED + 2048)
SX, SW, SO, S3, S4, S5 = 's[4:7]', 's[8:11]', 's[12:15]', 's[16:19]', 's[20:23]', 's[40:43]'
def fb(x): return struct.unpack('<I', struct.pack('<f', x))[0]
def hx_(x): return f'{fb(x):#x}'
def vr(a, n): return f'v[{a}:{a+n-1}]'
OP = [[1,2,3,4],[5,6,7,0],[8,9,10,11],[12,13,14,15]]
OM = [[15,14,13,12],[11,10,9,0],[8,7,6,5],[4,3,2,1]]

def gen(stamps=False, maxit=1 << 16, crep=8, trunc=0, pf=1, wd1=16, prio=1, mfb=2, pfc=2, xb=0, fastc=1, extl=1, wpa=0, wpb=9, ybp=4, pfw=1, pfr=1, order='btwx', xexp=0, yexp=0, zb=1, ntg=1, ntw=0, nto=3, ntx=0, remap=1, pm=0, pa2=0, pb2=0, red0=64, prew=14, xrp=0, tch=0, tcf=0, pl='sc1', ps='sc1', plz='sc1', psz='sc1', pwo=1, plc='sc1', cpw=2, xs=0, yo=1, self_=0, seld=0, gexp=0, fsc=1, pss='sc1', psc='sc1', name=NAME + '_kernel'):
    class C: pass
    c = C(); c.RS, c.NEG, c.XLOC, c.PL0, c.SRS = RS, NEG, XLOC, PL0, SRS; c.ZSC = 1.00105 if trunc else 1.0; c.extl = extl
    com, yb, ra = tabs.tables(c)
    TCOM = 4096; TYB = com.size * 4; TRA = TYB + yb.size * 4; TSZ = TRA + ra.size * 4
    k = KB()
    vPF = 3
    def wpf_at(pos):
        a, b = wpa == pos, wpb == pos
        if not (a or b): return 0
        if not b: k("s_mov_b32 exec_hi, 0")
        if not a: k("s_mov_b32 exec_lo, 0")
        k(f"global_load_dword v27, v{vPF}, s[30:31]")
        if a != b: k("s_mov_b64 exec, -1")
        return 1
    wp3 = 1 if 3 in (wpa, wpb) else 0; wpf = wp3 + (1 if 5 in (wpa, wpb) else 0); wp4 = 1 if 4 in (wpa, wpb) else 0; wp8 = 1 if 8 in (wpa, wpb) else 0; wp9 = 1 if 9 in (wpa, wpb) else 0
    NG, NW, NO, NX = [' nt' if f else '' for f in (ntg, ntw, nto, ntx)]
    NO = ['', ' nt', ' sc1', ' sc0 sc1', ' sc1 nt', ' sc0 sc1 nt'][nto]
    NONCE = "s_add_u32 s24, s24, 1\ns_and_b32 s29, s24, 0xff"
    if pwo == 4: NONCE += "\ns_cselect_b32 s28, 0, 1\ns_or_b32 s24, s24, s28\ns_or_b32 s29, s29, s28"
    def stamp(i):
        if stamps: k(f"s_memrealtime s[{64+2*i}:{65+2*i}]")
    def mask64(reg, val):
        k(f"s_mov_b32 s{reg}, {val & 0xffffffff:#x}\ns_mov_b32 s{reg+1}, {val >> 32:#x}")
    def setexec(val):
        if val == -1 or val < 64: k(f"s_mov_b64 exec, {val}")
        elif val < 1 << 31: k(f"s_mov_b64 exec, {val:#x}")
        else: k(f"s_mov_b32 exec_lo, {val & 0xffffffff:#x}\ns_mov_b32 exec_hi, {val >> 32:#x}")
    def poll(issue, check, cnt, issued=False, vm=0, masked=False):
        L = k.lab('P')
        k(f"s_mov_b32 {cnt}, 0")
        if issued: k(f"s_waitcnt vmcnt({vm})\ns_branch {L}_c")
        k(f"{L}:"); issue(); k(f"s_waitcnt vmcnt(0)\n{L}_c:"); check()
        k(f"s_and_b64 exec, exec, vcc\ns_cbranch_scc0 {L}_x" if masked else f"s_cbranch_vccz {L}_x")
        k(f"s_add_u32 {cnt}, {cnt}, 1\ns_cmp_lt_u32 {cnt}, {maxit}\ns_cbranch_scc1 {L}\n{L}_x:")
        if masked: k("s_mov_b64 exec, -1")
    def poll2(issue, n, ra, rb, check, cnt, vm):
        L = k.lab('P')
        k(f"s_mov_b32 {cnt}, 0\ns_waitcnt vmcnt({vm})\ns_branch {L}_c\n{L}:\ns_waitcnt vmcnt({n})\n{L}_c:")
        check(ra); k(f"s_and_b64 exec, exec, vcc\ns_cbranch_scc0 {L}_x"); issue(ra)
        k(f"s_waitcnt vmcnt({n})")
        check(rb); k(f"s_and_b64 exec, exec, vcc\ns_cbranch_scc0 {L}_x"); issue(rb)
        k(f"s_add_u32 {cnt}, {cnt}, 1\ns_cmp_lt_u32 {cnt}, {maxit}\ns_cbranch_scc1 {L}\n{L}_x:\ns_mov_b64 exec, -1")
    def or_tree(regs, acc):
        regs = list(regs)
        if len(regs) == 1: k(f"v_mov_b32 v{acc}, v{regs[0]}"); return
        if len(regs) == 2: k(f"v_or_b32 v{acc}, v{regs[0]}, v{regs[1]}"); return
        k(f"v_or3_b32 v{acc}, v{regs[0]}, v{regs[1]}, v{regs[2]}"); regs = regs[3:]
        while len(regs) >= 2: k(f"v_or3_b32 v{acc}, v{acc}, v{regs[0]}, v{regs[1]}"); regs = regs[2:]
        if regs: k(f"v_or_b32 v{acc}, v{acc}, v{regs[0]}")
    def check_f32(regs, acc, vt, src=None):
        for i, r in enumerate(regs): k(f"v_xor_b32 v{r}, v{vt}, v{r if src is None else src + i}")
        or_tree(regs, acc); k(f"v_and_b32 v{acc}, 0xff, v{acc}\nv_cmp_ne_u32 vcc, 0, v{acc}")
    def check_word(regs):
        k(f"v_cmp_ne_u32 vcc, s24, v{regs[0]}")
        for r in regs[1:]: k(f"v_cmp_ne_u32 s[38:39], s24, v{r}\ns_or_b64 vcc, vcc, s[38:39]")
    def top2_step(a, b, t, ctrl):
        k(f"""v_min_u32_dpp v{t}, v{a}, v{a} {ctrl}
        v_max_u32_dpp v{b}, v{b}, v{b} {ctrl}
        v_max_u32_dpp v{a}, v{a}, v{a} {ctrl}
        v_max_u32 v{b}, v{b}, v{t}""")
    FULL = 'row_mask:0xf bank_mask:0xf'
    def cand_top2(c, voff, cnt, issued=False, vm=0):
        def issue():
            k(f"buffer_load_dwordx4 {vr(c,4)}, v{voff}, {SW}, s45 offen {plc}\nbuffer_load_dwordx4 {vr(c+4,4)}, v{voff}, {SW}, s45 offen offset:1024 {plc}")
        if issued == 'issue': issue(); return
        poll(issue, lambda: check_word([c + 2, c + 6]), cnt, issued, vm)
        a, b, t = c + 2, c + 3, c + 6
        k(f"v_max_u32 v{a}, v{c}, v{c+4}\nv_min_u32 v{t}, v{c}, v{c+4}\nv_max3_u32 v{b}, v{t}, v{c+1}, v{c+5}")
        for s in (8, 4, 2, 1): top2_step(a, b, t, f'row_ror:{s} {FULL}')
        top2_step(a, b, t, 'row_bcast:15 row_mask:0xa bank_mask:0xf')
        top2_step(a, b, t, 'row_bcast:31 row_mask:0xc bank_mask:0xf')
        k(f"v_readlane_b32 s46, v{a}, 63\nv_readlane_b32 s47, v{b}, 63")
    def rowsel(dst, srcs):
        if srcs[0] != dst: k(f"v_mov_b32 v{dst}, v{srcs[0]}")
        for mg in (1, 2, 3): k(f"v_mov_b32_dpp v{dst}, v{srcs[mg]} quad_perm:[0,1,2,3] row_mask:{1<<mg:#x} bank_mask:0xf")

    vL, vL16 = 1, 2
    vATR, vXB, vSA1, vSA2, vSRD, vRK, vSO, vMSK = 4, 5, 6, 7, 8, 9, 10, 11
    vAP, vAN, vF1, vF2 = 12, 13, 14, 15
    vABb, vABk, vZO, vK0, vEP, vEM, vEX = 20, 21, 22, 23, 24, 25, 26
    WA, XT, ON, D1, DD, D3 = 32, 48, 64, 68, 72, 76
    TW, B2, B1P, B1M, D2, RA, XA, XB, WO, WT = 80, 96, 112, 120, 112, 128, 132, 140, 148, 156
    PA, MA, PB, MB, XR = 176, 192, 208, 224, 240
    ST, vST0, vST1, vE0, vE1 = 112, 228, 229, 230, 231
    SOT = 112
    vOF = 172
    stamp(0)
    k(f"""s_load_dwordx2 s[4:5], s[0:1], 0
    s_load_dwordx2 s[8:9], s[0:1], 96
    s_load_dwordx2 s[12:13], s[0:1], 80
    s_getpc_b64 s[26:27]
    L_pc:
    s_add_u32 s16, s26, L_tab@rel32@lo+4
    s_addc_u32 s17, s27, L_tab@rel32@hi+12
    v_lshrrev_b32 v3, 6, v0
    v_and_b32 v{vL}, 63, v0
    s_mov_b32 s7, 0x20000
    v_readfirstlane_b32 s3, v3
    s_mov_b32 s11, 0x20000
    s_mov_b32 s19, 0x20000
    s_mov_b32 s23, 0x20000
    v_lshlrev_b32 v{vL16}, 4, v{vL}
    s_mov_b32 s18, {TRA-128}""")
    if xs:
        k(f"""s_cmp_ge_u32 s2, 256
        s_cbranch_scc1 L_end
        s_lshr_b32 s30, s2, 3
        s_lshl_b32 s30, s30, 2
        s_and_b32 s31, s2, 3
        s_or_b32 s30, s30, s31
        s_bitcmp1_b32 s2, 2
        s_cselect_b32 s31, {'0, 128' if xs == 1 else '128, 0'}
        s_or_b32 s2, s30, s31""")
    k(f"""s_cmp_ge_u32 s2, 128
    s_cbranch_scc1 L_ffn0
    s_load_dwordx2 s[20:21], s[0:1], 48""")
    k("s_mov_b32 s47, s2")
    if remap:
        k("""s_and_b32 s30, s2, 7
        s_sub_u32 s31, 16, s30
        s_cmp_eq_u32 s30, 0
        s_cselect_b32 s31, 8, s31
        s_bitcmp1_b32 s2, 3
        s_cselect_b32 s30, s31, s30
        s_and_b32 s2, s2, 0x70
        s_or_b32 s2, s2, s30""")
    k(f"""
    s_mov_b32 s18, {TSZ}
    s_lshl_b32 s30, s3, 8
    v_and_b32 v16, 15, v{vL}
    v_lshrrev_b32 v17, 4, v{vL}
    v_cmp_eq_u32 vcc, 4, v16
    v_mov_b32 v{ON}, 0x3f803f80
    v_lshl_add_u32 v18, v17, 4, s30
    s_add_u32 s30, s30, s2
    s_cmp_eq_u32 s2, 0
    s_cselect_b32 s32, 896, 0
    v_cndmask_b32_e64 v{WA}, 0, v{ON}, vcc
    s_cmp_ge_u32 s3, 4
    s_cselect_b32 s32, s32, 0
    s_sub_u32 s30, s30, s32
    s_sub_u32 s31, 2048, s30
    s_cmp_eq_u32 s30, 0
    s_cselect_b32 s31, 1024, s31
    s_lshl_b32 s32, s30, 11
    s_lshl_b32 s33, s31, 11
    s_mul_i32 s34, s3, {2*XRS}
    s_mov_b32 s6, 0x400000
    s_mov_b32 s22, 2048""")
    def ld_t(sal=True):
        if sal: k(f"""s_lshl_b32 s46, s3, 11
        s_add_u32 s39, s46, {LT}
        s_add_u32 s46, s46, {TCOM}
        s_cmp_eq_u32 s2, 0
        s_cselect_b32 s37, 2048, 0
        s_add_u32 s37, s37, s46
        s_cmp_eq_u32 s3, 6
        s_cselect_b32 s46, s37, s46
        s_lshl_b32 s37, s2, 10
        s_add_u32 s37, s37, {TRA}
        s_cmp_eq_u32 s3, 7
        s_cselect_b32 s46, s37, s46""")
        if sal != 'only': k(f"s_mov_b32 m0, s39\nbuffer_load_dwordx4 v{vL16}, {S3}, s46 offen lds\nbuffer_load_dwordx4 v{vL16}, {S3}, s46 offen offset:1024 lds")
    def ld_b():
        k(f"""s_lshl_b32 s38, s3, 9
        s_add_u32 m0, s38, {LB1}
        s_mov_b32 exec_hi, 0
        buffer_load_dwordx4 v{vL16}, {S3}, s38 offen lds
        s_mov_b32 exec_hi, -1""")
    def ld_w():
        k("s_mov_b32 exec_lo, 0x01010101\ns_mov_b32 exec_hi, 0x01010101")
        for u in range(4): k(f"buffer_load_dwordx4 {vr(WA+4*u,4)}, v18, {S4}, 0 offen offset:{64*u}")
        k("s_mov_b64 exec, -1")
    pre, post = order.split('x')
    ld = dict(t=ld_t, b=ld_b, w=ld_w, s=lambda: ld_t('only'))
    for ch in pre:
        if ch != 'w': ld[ch]()
    for i in range(1, 16): k(f"v_mov_b32 v{WA+i}, v{WA}")
    k("s_mov_b32 m0, s34\ns_waitcnt lgkmcnt(0)")
    stamp(14)
    if 'w' in pre: ld_w()
    k(f"""buffer_load_dwordx4 v{vL16}, {SX}, s32 offen lds
    buffer_load_dwordx4 v{vL16}, {SX}, s32 offen offset:1024 lds
    s_add_u32 m0, m0, {XRS}
    s_load_dword s24, s[8:9], 0
    buffer_load_dwordx4 v{vL16}, {SX}, s33 offen lds
    buffer_load_dwordx4 v{vL16}, {SX}, s33 offen offset:1024 lds
    {"s_barrier" if xb else ""}""")
    if xexp:
        k("s_waitcnt vmcnt(3)"); stamp(10); k("s_waitcnt vmcnt(0)"); stamp(11)
    k("s_branch L_fft1")
    k(f"""L_ffn0:
    s_cmp_ge_u32 s2, 256
    s_cbranch_scc1 L_end
    s_sub_u32 s30, s2, 128""")
    if pf:
        k(f"""s_lshr_b32 s31, s30, 3
        s_lshl_b32 s31, s31, 13
        s_sub_u32 s32, s31, {pfc*8192}
        s_cselect_b32 s31, s31, s32
        s_cselect_b64 s[16:17], s[26:27], s[16:17]
        s_cselect_b32 s32, L_end-L_pc, s18
        v_and_b32 v4, 0x1f8, v0
        v_lshl_add_u32 v4, v4, 4, s31
        v_min_u32 v4, s32, v4
        global_load_dword v57, v4, s[16:17]""")
    if pfr: k("s_load_dwordx2 s[38:39], s[0:1], 48\nv_and_b32 v58, 0x7f0, v0\nv_lshlrev_b32 v58, 2, v58")
    k(f"""s_load_dwordx4 s[16:19], s[0:1], 56
    s_load_dwordx2 s[40:41], s[0:1], 72
    s_lshr_b32 s31, s30, 4
    s_and_b32 s32, s30, 15
    s_lshl_b32 s33, s32, 3
    s_add_u32 s33, s33, s3
    s_mul_i32 s33, s33, {8*7168}
    s_mul_i32 s34, s31, 896
    s_add_u32 s33, s33, s34
    s_and_b32 s34, s3, 3
    s_mul_i32 s34, s34, {4*GUS}
    s_lshr_b32 s35, s3, 2
    s_mul_i32 s35, s35, {32*GUS}
    s_add_u32 m0, s34, s35
    s_mov_b32 s22, 7340032""")
    if pwo == 4:
        k(f"""s_mov_b32 s10, {WSN}
        s_lshl_b32 s36, s3, 10
        s_mul_i32 s37, s30, 7168
        s_add_u32 s37, s37, s36
        s_add_u32 s37, s37, {AB}
        s_lshl_b32 s49, s30, 13
        s_add_u32 s49, s49, s36
        s_add_u32 s49, s49, {BB}""")
        for i in range(4): k(f"v_mov_b32 v{60+i}, 0")
    else: k("s_mov_b32 exec_hi, 0x00ffffff")
    k(f"""s_waitcnt lgkmcnt(0)
    s_mov_b64 s[20:21], s[18:19]
    s_mov_b32 s18, 7340032
    s_mov_b32 s19, 0x20000
    s_load_dword s24, s[8:9], 0""")
    if pfr: k("s_cmp_lt_u32 s30, 8\ns_cbranch_scc0 L_npr\nglobal_load_dword v59, v58, s[38:39]\nL_npr:")
    if pwo == 4:
        assert prew & 6 == 6
        k(f"""buffer_store_dwordx4 v[60:63], v{vL16}, {SW}, s49 offen {ps}
        s_cmp_eq_u32 s3, 7
        s_cbranch_scc1 L_pw7
        buffer_store_dwordx4 v[60:63], v{vL16}, {SW}, s37 offen {ps}
        s_waitcnt vmcnt({2 if pfw else 63})
        s_branch L_pw
        L_pw7:
        s_waitcnt vmcnt({1 if pfw else 63})
        L_pw:
        s_mov_b32 exec_hi, 0x00ffffff""")
    elif pfw: k("s_waitcnt vmcnt(0)")
    if pfw == 2: k("s_waitcnt lgkmcnt(0)")
    if gexp:
        k(f"""s_mov_b32 exec_hi, -1
        s_cmp_ge_u32 s30, 112
        s_cbranch_scc1 L_ffn1
        v_lshrrev_b32 v4, 2, v{vL}
        v_mul_u32_u24 v4, 7168, v4
        v_and_b32 v5, 3, v{vL}
        v_lshl_add_u32 v4, v5, 4, v4
        s_and_b32 s33, s30, 0x70
        s_and_b32 s34, s30, 7
        s_lshl_b32 s34, s34, 1
        s_add_u32 s33, s33, s34
        s_bfe_u32 s34, s30, 0x10003
        s_add_u32 s33, s33, s34
        {"s_mov_b32 s33, s30" if gexp == 2 else ""}
        s_lshl_b32 s33, s33, 6
        s_mul_i32 s34, s3, {128*7168}
        s_add_u32 s33, s33, s34
        s_lshl_b32 m0, s3, 14""")
        for i in range(8):
            k(f"buffer_load_dwordx4 v4, {S3}, s33 offen{NG} lds\ns_add_u32 m0, m0, 1024\ns_nop 0\nbuffer_load_dwordx4 v4, {S4}, s33 offen{NG} lds\ns_add_u32 m0, m0, 1024\ns_add_u32 s33, s33, {16*7168}")
        k("s_branch L_ffn1")
    for i in range(8):
        k(f"buffer_load_dwordx4 v{vL16}, {S3}, s33 offen{NG} lds\ns_add_u32 m0, m0, {UPL}")
        k(f"s_nop 0\nbuffer_load_dwordx4 v{vL16}, {S4}, s33 offen{NG} lds")
        if i < 7: k(f"s_sub_u32 m0, m0, {UPL - (13 if i == 3 else 1) * GUS}\ns_add_u32 s33, s33, 7168")
    k("s_mov_b32 exec_hi, -1\ns_branch L_ffn1")

    def yb_dma():
        k(f"""s_lshl_b32 s37, s41, 15
        s_lshl_b32 s38, s3, 12
        s_add_u32 m0, s38, {YBL}
        s_add_u32 s37, s37, s38
        s_add_u32 s37, s37, {TYB}""")
        for i in range(4): k(f"buffer_load_dwordx4 v{vL16}, {S3}, s37 offen offset:{1024*i} lds")
    def xres_load():
        for q in range(4): k(f"buffer_load_dwordx4 {vr(XR+4*q,4)}, v{vOF+q}, {SX}, 0 offen{NX}")
    k("L_fft1:\ns_bfe_u32 s41, s2, 0x10003")
    if wpa or wpb:
        k(f"""s_load_dwordx2 s[30:31], s[0:1], 72
        s_min_u32 s36, s47, 111
        s_lshl_b32 s36, s36, 16
        s_lshr_b32 s37, s3, 1
        s_lshl_b32 s37, s37, 14
        s_add_u32 s36, s36, s37
        s_and_b32 s37, s3, 1
        s_lshl_b32 s37, s37, 12
        s_add_u32 s36, s36, s37
        v_and_b32 v19, 1, v17
        v_and_b32 v20, 2, v17
        v_lshl_add_u32 v{vPF}, v16, 7, s36
        v_lshl_add_u32 v{vPF}, v19, 11, v{vPF}
        v_lshl_add_u32 v{vPF}, v20, 12, v{vPF}""")
    k(f"""s_and_b32 s40, s2, 7
    s_lshr_b32 s42, s2, 4
    s_and_b32 s43, s2, 15
    v_lshrrev_b32 v19, 3, v0
    v_and_b32 v20, 7, v0
    v_lshl_add_u32 v19, v19, 4, s43
    s_lshl_b32 s44, s42, 7
    v_lshl_add_u32 v20, v20, 4, s44
    v_lshl_add_u32 v{vOF}, v19, 11, v20
    v_sub_u32 v19, 1024, v19
    v_sub_u32 v20, 2032, v20
    v_add_u32 v{vOF+2}, 0x200000, v{vOF}
    v_lshl_add_u32 v{vOF+3}, v19, 11, v20
    v_add_u32 v{vOF+1}, 0x200000, v{vOF+3}
    v_and_b32 v{vOF+1}, 0x3fffff, v{vOF+1}""")
    k(f"""v_mul_u32_u24 v{vXB}, {XRS}, v16
    v_add_u32 v{vXB}, v{vXB}, v18
    s_mov_b32 s36, {SACC}
    v_lshl_add_u32 v{vSRD}, v{vL}, 5, s36
    v_lshrrev_b32 v19, 3, v{vL}
    v_add_u32 v19, s3, v19
    v_and_b32 v20, 7, v19
    v_lshl_add_u32 v{vSA1}, v20, 2, v{vSRD}
    v_lshlrev_b32 v21, 1, v17
    v_sub_u32 v19, v19, v21
    v_add_u32 v19, 6, v19
    v_and_b32 v19, 7, v19
    v_lshlrev_b32 v19, 2, v19
    v_lshl_add_u32 v20, v16, 5, v19
    v_add_u32 v20, {SACC+48*32}, v20
    v_add_u32 v21, 2048, v{vSA1}
    s_mov_b32 s36, 0x00f0000f
    s_mov_b32 s37, 0xf0000f00
    v_cndmask_b32_e64 v{vSA2}, v21, v20, s[36:37]
    v_bfe_u32 v20, v{vL}, 2, 2
    v_and_b32 v21, 3, v{vL}
    v_lshrrev_b32 v22, 5, v{vL}
    v_lshl_add_u32 v22, v22, 3, v20
    v_and_b32 v23, 1, v17
    v_lshlrev_b32 v22, 6, v22
    v_lshl_add_u32 v22, v23, 5, v22
    v_lshl_add_u32 v22, v21, 3, v22
    v_add_u32 v{vATR}, s34, v22
    v_mov_b32 v{ON+1}, v{ON}
    v_mov_b32 v{ON+2}, v{ON}
    v_mov_b32 v{ON+3}, v{ON}
    v_mov_b32 v{vMSK}, 0xfffcfffc
    s_mov_b32 s10, {WSN}
    s_mov_b32 s14, 0x400000
    s_mov_b32 s15, 0x20000
    s_lshl_b32 s34, s3, 1
    s_add_u32 s35, s34, 17
    s_add_u32 s34, s34, 16""")
    mask64(48, 0x2222222222222222); mask64(50, 0x4444444444444444); mask64(52, 0x8888888888888888)
    k(f"""v_lshrrev_b32 v20, 1, v16
    v_lshlrev_b32 v20, 8, v20
    s_cmp_eq_u32 s2, 0
    s_cselect_b32 s36, 896, 0
    s_cselect_b32 s55, 0x10000, 0
    s_mov_b32 s54, 0xffff0000
    v_bfe_u32 v21, v{vL}, 3, 1
    v_mul_u32_u24 v21, s36, v21
    v_add_u32 v20, s2, v20
    v_sub_u32 v20, v20, v21
    v_sub_u32 v21, 0x800, v20
    v_cmp_eq_u32 vcc, 0, v20
    v_mov_b32 v22, 0x400
    s_mov_b32 s36, 0xaaaaaaaa
    s_mov_b32 s37, s36
    v_cndmask_b32_e64 v21, v21, v22, vcc
    v_cndmask_b32_e64 v20, v20, v21, s[36:37]
    v_sub_u32 v{vRK}, 0xffff, v20
    v_and_b32 v21, 15, v20
    v_and_b32 v20, 0x7f0, v20
    v_lshl_add_u32 v{vSO}, v21, 12, v20
    v_mov_b32 v21, 0x800
    v_mov_b32_dpp v{vSO}, v21 quad_perm:[0,1,2,3] row_mask:0xd bank_mask:0xf""")
    ld['y'] = yb_dma
    for ch in post: ld[ch]()
    nq = 2 if post.endswith('t') else 0
    ny = (4 if post.endswith('y') else 0) + (4 if xrp == 1 else 0)
    if xrp == 1: xres_load()
    if tcf:
        k(f"v_lshlrev_b32 v27, {tcf}, v{vL}\ns_cmp_ge_u32 s3, 2\ns_cbranch_scc1 L_tcf")
        setexec(-1 if tcf == 16 else (1 << ((4 << 20) >> tcf)) - 1)
        k(f"s_cmp_eq_u32 s3, 0\ns_cbranch_scc1 L_tcf0\nbuffer_load_dword v27, v27, {SO}, 0 offen\ns_branch L_tcf1\nL_tcf0:\nbuffer_load_dword v27, v27, {SW}, 0 offen sc1\nL_tcf1:")
        setexec(-1)
        k(f"s_waitcnt vmcnt({ny + 1})\ns_branch L_tcf2\nL_tcf:")
    if prew & 1:
        k(f"""s_lshl_b32 s37, s2, 14
        s_lshl_b32 s38, s3, 11
        s_add_u32 s37, s37, s38
        s_add_u32 s37, s37, {ZB}
        s_waitcnt lgkmcnt(0)
        s_sub_u32 s36, -2, s24""")
        for i in range(4): k(f"v_mov_b32 v{XT+i}, s36")
        k(f"buffer_store_dwordx4 {vr(XT,4)}, v{vL16}, {SW}, s37 offen sc1\nbuffer_store_dwordx4 {vr(XT,4)}, v{vL16}, {SW}, s37 offen offset:1024 sc1")
    stamp(16)
    k(f"s_waitcnt vmcnt({nq + ny + 2 * (prew & 1)})")
    if tcf: k("L_tcf2:")
    stamp(1)
    for u in range(4): k(f"v_mfma_f32_16x16x32_bf16 {vr(D3,4)}, {vr(WA+4*u,4)}, {vr(ON,4)}, {vr(D3,4) if u else 0}")
    k("s_waitcnt lgkmcnt(0)\ns_barrier")
    stamp(15)
    def z_prew():
        k(f"""s_lshl_b32 s63, s2, 14
        s_lshl_b32 s38, s3, 8
        s_add_u32 s63, s63, s38
        s_add_u32 s63, s63, {ZB}
        s_not_b32 s38, s24""")
        for i in range(4): k(f"v_mov_b32 v{WO+i}, s38")
        for kk in range(2): k(f"buffer_store_dwordx4 {vr(WO,4)}, v{vZO}, {SW}, s63 offen offset:{2048*kk} sc1")
    if prew & 32: k(f"ds_read_b32 v{vZO}, v{vL16} offset:{LT+12*1024+8}")
    for u in range(4): k(f"ds_read_b128 {vr(XT+4*u,4)}, v{vXB} offset:{64*u}")
    for i in range(4): k(f"ds_read_b64_tr_b16 {vr(XA+2*i,2)}, v{vATR} offset:{(i//2)*1024 + (i%2)*256}")
    for q in range(2): k(f"ds_read_b128 {vr(B1P+4*q,4)}, v{vL16} offset:{LB1+1024*q}")
    if 's' in order: ld_t(False)
    wpf_at(1)
    def ab_pre():
        k(f"""s_cmp_ge_u32 s3, 2
        s_cbranch_scc1 L_abp
        s_mul_i32 s36, s2, 7168
        s_lshl_b32 s37, s3, 20
        s_add_u32 s36, s36, s37
        s_add_u32 s36, s36, {AB}
        v_lshlrev_b32 v27, 7, v{vL}
        s_mov_b32 exec_hi, 0x00ffffff
        buffer_load_dword v27, v27, {SW}, s36 offen sc1
        s_mov_b32 exec_hi, -1
        L_abp:""")
    if prew & 64: ab_pre()
    if xrp == 2: xres_load()
    k(NONCE)
    for u in range(4):
        k(f"s_waitcnt lgkmcnt({9-u})")
        if u == 1 and prew & 32: z_prew()
        k(f"v_mfma_f32_16x16x32_bf16 {vr(DD,4)}, {vr(XT+4*u,4)}, {vr(XT+4*u,4)}, {vr(DD,4) if u else 0}")
        k(f"v_mfma_f32_16x16x32_bf16 {vr(D1,4)}, {vr(WA+4*u,4)}, {vr(XT+4*u,4)}, {vr(D1,4) if u else 0}")
    for q in range(2, 4): k(f"ds_read_b128 {vr(B1P+4*q,4)}, v{vL16} offset:{LB1+1024*q}")
    for i in range(4): k(f"ds_read_b64_tr_b16 {vr(XB+2*i,2)}, v{vATR} offset:{XRS + (i//2)*1024 + (i%2)*256}")
    mf = []
    for (acc, X, Bm) in ((PA, XA, B1P), (MA, XA, B1M), (PB, XB, B1P), (MB, XB, B1M)):
        for u in range(2): mf.append(f"v_mfma_f32_32x32x16_bf16 {vr(acc,16)}, {vr(X+4*u,4)}, {vr(Bm+4*u,4)}, {vr(acc,16) if u else 0}")
    k(f"""v_cndmask_b32_e64 v{DD}, v{DD}, v{DD+1}, s[48:49]
    v_cndmask_b32_e64 v{DD+2}, v{DD+2}, v{DD+3}, s[52:53]
    v_mov_b32_dpp v{D1}, v{D3} quad_perm:[0,1,2,3] row_mask:0x4 bank_mask:0xf
    s_or_b64 s[50:51], s[50:51], s[52:53]
    ds_write_b32 v{vSA1}, v{D1}
    v_cndmask_b32_e64 v{DD}, v{DD}, v{DD+2}, s[50:51]
    ds_write_b32 v{vSA2}, v{DD}""")
    k(f"s_waitcnt lgkmcnt({8 if mfb <= 2 else 6})")
    for i in range(mfb): k(mf.pop(0))
    k(("s_waitcnt vmcnt(0) lgkmcnt(0)" if nq or 's' in order or prew & 1 else "s_waitcnt lgkmcnt(0)") + "\ns_barrier")
    assert not ((nq or 's' in order) and 1 in (wpa, wpb))
    stamp(17)
    S0 = 28
    k(f"ds_read_b128 {vr(S0,4)}, v{vSRD}\nds_read_b128 {vr(D1,4)}, v{vSRD} offset:16")
    k(f"ds_read_b128 {vr(vABb,4)}, v{vL16} offset:{LT+12*1024}\nds_read_b128 {vr(vAP,4)}, v{vL16} offset:{LT+8*1024}")
    for q in range(4): k(f"ds_read_b128 {vr(TW+4*q,4)}, v{vL16} offset:{LT+1024*q}")
    for q in range(4): k(f"ds_read_b128 {vr(B2+4*q,4)}, v{vL16} offset:{LT+4096+1024*q}")
    k(f"ds_read_b128 {vr(RA,4)}, v{vL16} offset:{LT+14*1024}\nds_read_b128 {vr(vEP,4)}, v{vL16} offset:{LT+13*1024}")
    if fastc: k("s_cmp_eq_u32 s3, 7\ns_cbranch_scc1 L_cw")
    if xrp == 3: xres_load()
    mf7 = list(mf)
    k(mf.pop(0))
    SXW, SX_, SW_, SXX = S0, S0 + 1, S0 + 2, S0 + 3
    chain = f"""v_pk_add_f32 {vr(S0,2)}, {vr(S0,2)}, {vr(S0+2,2)}
    v_pk_add_f32 {vr(D1,2)}, {vr(D1,2)}, {vr(D1+2,2)}
    v_pk_add_f32 {vr(S0,2)}, {vr(S0,2)}, {vr(D1,2)}
    v_add_f32 v{D1}, v{S0}, v{S0+1}
    v_add_f32 v{SXX}, v{S0}, v{S0+1}
    v_permlane32_swap_b32 v{D1}, v{SXX}
    v_mov_b32 v{D1+1}, v{SXX}
    v_mul_f32 v{SX_}, {hx_(1/1024)}, v{D1}
    v_mul_f32 v{SXX}, {hx_(1/1024)}, v{SXX}
    v_fma_f32 v{SXX}, -v{SX_}, v{SX_}, v{SXX}
    v_max_f32 v{SXX}, 0, v{SXX}
    v_cvt_pk_bf16_f32 v{SXX}, v{SXX}, v{SXX}
    v_and_b32 v{SXX}, 0xffff0000, v{SXX}
    v_add_f32 v{SXX}, 0x3727c5ac, v{SXX}
    v_cvt_pk_bf16_f32 v{SXX}, v{SXX}, v{SXX}
    v_and_b32 v{SXX}, 0xffff0000, v{SXX}
    v_sqrt_f32 v{SXX}, v{SXX}
    v_mov_b32 v18, s24
    v_cvt_pk_bf16_f32 v19, v{SX_}, v{SXX}
    v_and_b32 v16, 0xffff0000, v19
    v_rcp_f32 v16, v16
    v_lshlrev_b32 v17, 16, v19
    v_mul_f32 v17, v17, v16
    v_readlane_b32 s56, v16, s34
    v_readlane_b32 s57, v16, s35
    v_readlane_b32 s58, v17, s34
    v_readlane_b32 s59, v17, s35""".split('\n')
    k("s_waitcnt lgkmcnt(12)")
    nm = len(mf)
    for i, ln in enumerate(chain):
        k(ln)
        if mf and (i + 1) * nm // len(chain) > nm - len(mf): k(mf.pop(0))
    assert not mf
    def cand_code():
        k(f"""    v_permlane16_swap_b32 v{SXW}, v{D1}
    v_permlane16_swap_b32 v{SW_}, v{D1+1}
    v_lshlrev_b32 v{SX_}, 16, v19
    v_fma_f32 v{SXW}, -v{SX_}, v{SW_}, v{SXW}
    v_mul_f32 v{SXW}, v{SXW}, v16
    v_cvt_pk_bf16_f32 v{SXW}, v{SXW}, v{SXW}
    s_lshl_b32 s37, s2, 4
    v_ashrrev_i32 v{SX_}, 31, v{SXW}
    s_add_u32 s37, s37, {CAND-32768}
    v_or_b32 v{SX_}, 0x80000000, v{SX_}
    v_xor_b32 v{SXW}, v{SXW}, v{SX_}
    v_and_b32 v{SXW}, 0xffff0000, v{SXW}
    v_or_b32 v{SXW}, v{SXW}, v{vRK}
    v_mov_b32 v{SW_}, v18
    v_lshlrev_b32 v{vRK}, 11, v{vL}
    v_min_u32_dpp v{SX_}, v{SXW}, v{SXW} row_ror:8 {FULL}
    v_max_u32_dpp v{SXW}, v{SXW}, v{SXW} row_ror:8 {FULL}""")
        for s in (4, 2, 1): top2_step(SXW, SX_, SXX, f'row_ror:{s} {FULL}')
        setexec(((1 << crep) - 1) << 16)
        k(f"""buffer_store_dwordx4 {vr(S0,4)}, v{vRK}, {SW}, s37 offen {psc}
    s_mov_b64 exec, s[54:55]
    s_mov_b32 s37, {STATS}
    buffer_store_dwordx4 v[16:19], v{vSO}, {SW}, s37 offen {psc}""")
        setexec(-1)
    def cand_wave():
        k("L_cw:")
        if prio: k("s_setprio 2")
        k("s_waitcnt lgkmcnt(12)")
        for ln in chain: k(ln)
        cand_code()
        if xrp == 3: xres_load()
        if prio: k("s_setprio 0")
        for m in mf7: k(m)
        k("s_branch L_nocand")
    if not fastc:
        k("s_cmp_lg_u32 s3, 7\ns_cbranch_scc1 L_nocand")
        cand_code()
    k("L_nocand:")
    stamp(2)
    wpf_at(2)
    if prew & 128: ab_pre()
    if xrp == 4: xres_load()
    if ybp:
        k(f"""s_lshl_b32 s63, s41, 15
        s_lshl_b32 s38, s3, 13
        s_add_u32 m0, s38, {YBL}
        s_add_u32 s63, s63, s38
        s_add_u32 s63, s63, {TYB}""")
    k(f"""s_mov_b32 s60, s57
    s_mov_b32 s61, s59
    s_or_b32 s62, s2, s3
    s_cselect_b32 s57, s57, 0
    s_cselect_b32 s59, s59, 0
    s_mul_i32 s36, s3, {2*RS}
    s_lshl_b32 s37, s3, 5
    s_waitcnt lgkmcnt(10)
    v_add_u32 v{vABk}, s37, v{vABk}
    v_add_u32 v{vAP}, s36, v{vAP}
    v_add_u32 v{vAN}, s36, v{vAN}
    v_add_u32 v{vF1}, s36, v{vF1}
    v_add_u32 v{vF2}, s36, v{vF2}
    v_and_b32 v{vABk}, 0xff, v{vABk}
    v_add_u32 v{vABb}, v{vABb}, v{vABk}""")
    if prew & 16: z_prew()
    k(f"""L_job:
    v_mul_f32 v18, s58, v{vK0}
    v_mul_f32 v19, s59, v{vK0}
    v_add_f32 v16, v18, v19
    v_sub_f32 v17, v18, v19""")
    for g in range(8):
        t = WT + 8 * (g % 2); Wr, Wi = vr(t, 2), vr(t + 2, 2)
        u, hf = g // 2, g % 2
        c_, s_ = TW + 4 * u + hf, TW + 4 * u + 2 + hf
        k(f"""v_pk_fma_f32 {Wr}, {vr(PA+2*g,2)}, s[56:57], v[16:17] op_sel:[0,0,0] op_sel_hi:[1,0,0]
        v_pk_fma_f32 {Wi}, {vr(MA+2*g,2)}, s[56:57], v[16:17] op_sel:[0,0,1] op_sel_hi:[1,0,1]
        v_pk_fma_f32 {Wr}, {vr(MB+2*g,2)}, s[56:57], {Wr} op_sel:[0,1,0] op_sel_hi:[1,1,1]
        v_pk_fma_f32 {Wi}, {vr(PB+2*g,2)}, s[56:57], {Wi} op_sel:[0,1,0] op_sel_hi:[1,1,1] neg_lo:[1,0,0] neg_hi:[1,0,0]""")
        if hf == 0 and u > 0: k(f"v_mfma_f32_32x32x16_f16 {vr(D2,16)}, {vr(XA+4*(u-1),4)}, {vr(B2+4*(u-1),4)}, {vr(D2,16) if u > 1 else 0}")
        if g == 0: k("s_waitcnt lgkmcnt(2)")
        if ybp and ybp <= g < ybp + 4:
            i = g - ybp
            k(f"s_cmp_ge_u32 s3, 4\ns_cbranch_scc1 L_yb{i}")
            if i == 2: k("s_add_u32 m0, m0, 4096\ns_add_u32 s63, s63, 4096")
            for j in range(2): k(f"buffer_load_dwordx4 v{vL16}, {S3}, s63 offen offset:{1024*(2*(i%2)+j)} lds")
            if i == 3: k("s_sub_u32 m0, m0, 4096\ns_sub_u32 s63, s63, 4096")
            k(f"L_yb{i}:")
        k(f"""v_cvt_pk_f16_f32 v{t+4}, v{t}, v{t+1}
        v_cvt_pk_f16_f32 v{t+5}, v{t+2}, v{t+3}
        v_pk_mul_f16 v{t+6}, v{t+4}, v{c_}
        v_pk_mul_f16 v{t+7}, v{t+5}, v{c_}
        v_pk_fma_f16 v{XA+4*u+hf}, v{t+5}, v{s_}, v{t+6}
        v_pk_fma_f16 v{XA+4*u+2+hf}, v{t+4}, v{s_}, v{t+7} neg_lo:[1,0,0] neg_hi:[1,0,0]""")
    k(f"v_mfma_f32_32x32x16_f16 {vr(D2,16)}, {vr(XA+12,4)}, {vr(B2+12,4)}, {vr(D2,16)}")
    k(f"""s_and_b32 s37, s24, 0x3333
    s_and_b32 s38, s24, 0xcccc
    s_lshl_b32 s38, s38, 14
    s_or_b32 s37, s37, s38
    s_and_b32 s25, s37, 0x30003
    s_lshr_b32 s38, s37, 4
    s_and_b32 s26, s38, 0x30003
    s_lshr_b32 s38, s37, 8
    s_and_b32 s27, s38, 0x30003
    s_lshr_b32 s38, s37, 12
    s_and_b32 s28, s38, 0x30003""")
    for i in range(4): k(f"v_cvt_pk_f16_f32 v{WO+i}, v{D2+2*i}, v{D2+2*i+1}")
    k(f"ds_write_b128 v{vAP}, {vr(WO,4)}")
    for i in range(4, 8): k(f"v_cvt_pk_f16_f32 v{WO+i}, v{D2+2*i}, v{D2+2*i+1}")
    k(f"""ds_write_b128 v{vAN}, {vr(WO+4,4)}
    ds_write_b16_d16_hi v{vF1}, v{WO+3}
    ds_write_b16_d16_hi v{vF2}, v{WO+7}
    s_cmp_lg_u32 s62, 0
    s_cbranch_scc0 L_job2
    L_jobx:
    s_lshl_b32 s37, s2, 14
    s_lshl_b32 s38, s3, 8
    s_add_u32 s37, s37, s38
    s_add_u32 s37, s37, {ZB}""")
    k("s_waitcnt lgkmcnt(0)\ns_barrier")
    stamp(3)
    for j in range(4):
        for v in range(2): k(f"ds_read_b64_tr_b16 {vr(XA+4*j+2*v,2)}, v{vABb} offset:{v*4*RS + (j//2)*256 + (j%2)*8}")
    k("s_cmp_lg_u32 s3, 6\ns_cbranch_scc1 L_noext0")
    for d in range(4): k(f"ds_read_u16 v{PA+d}, v{vEP} offset:{2*RS*d}\nds_read_u16 v{PA+4+d}, v{vEM} offset:{2*RS*d}")
    k(f"""s_lshl_b32 s38, s2, {9 if extl else 3}
    s_add_u32 s38, s38, {EXT}
    s_add_u32 s39, s38, {64 if extl else 8192}
    v_mov_b32 v{PA+17}, s24
    v_mov_b32 v{PA+19}, s24
    s_waitcnt lgkmcnt(0)""")
    for d in range(4): k(f"v_lshl_or_b32 v{PA+d}, v{PA+4+d}, 16, v{PA+d}")
    k(f"""v_mfma_f32_16x16x32_f16 {vr(PA+12,4)}, {vr(RA,4)}, {vr(PA,4)}, 0
    L_noext0:""")
    for j in range(4):
        k(f"s_waitcnt lgkmcnt({6-2*j})\nv_mfma_f32_16x16x32_f16 {vr(WT+4*j,4)}, {vr(RA,4)}, {vr(XA+4*j,4)}, 0")
    k(f"""s_cmp_lg_u32 s3, 6
    s_cbranch_scc1 L_noext
    v_cvt_pk_f16_f32 v{PA+16}, v{PA+12}, v{PA+13}
    v_cvt_pk_f16_f32 v{PA+18}, v{PA+14}, v{PA+15}""")
    setexec(0x00ff00ff00ff00ff)
    k(f"buffer_store_dwordx2 {vr(PA+16,2)}, v{vEX}, {SW}, s38 offen {psz}\nbuffer_store_dwordx2 {vr(PA+18,2)}, v{vEX}, {SW}, s39 offen {psz}")
    setexec(-1)
    k("L_noext:")
    for kk in range(2):
        for d in range(4):
            a = WT + 8 * (d % 2) + 2 * kk + d // 2
            k(f"v_cvt_pk_f16_f32 v{WO+4*kk+d}, v{a}, v{a+4}")
        if not trunc:
            for d in range(4): k(f"v_add_u32 v{WO+4*kk+d}, 0x20002, v{WO+4*kk+d}")
        for d in range(4): k(f"v_and_or_b32 v{WO+4*kk+d}, v{WO+4*kk+d}, v{vMSK}, s{25+d}")
        k(f"buffer_store_dwordx4 {vr(WO+4*kk,4)}, v{vZO}, {SW}, s37 offen offset:{2048*kk} {psz}")
    stamp(4)
    if zb: k("s_barrier")
    wpf_at(6)
    CN = 164
    def st_issue():
        for i in range(4): k(f"buffer_load_dwordx3 {vr(ST+4*i,3)}, v{vL16}, {SW}, s{44+i//2} offen offset:{1024*(i%2)} sc1")
    if yo:
        k(f"""s_cmp_eq_u32 s3, 5
        s_cbranch_scc1 L_y01
        s_cmp_lg_u32 s3, 7
        s_cbranch_scc1 L_y03
        s_and_b32 s45, s2, {crep-1}
        s_lshl_b32 s45, s45, 11
        s_add_u32 s45, s45, {CAND}""")
        cand_top2(CN, vL16, 's63', issued='issue')
        k(f"""s_branch L_y03
        L_y01:
        s_sub_u32 s45, 16, s43
        s_and_b32 s45, s45, 15
        s_cselect_b32 s37, 0, 16
        s_lshl_b32 s45, s45, 12
        s_lshl_b32 s44, s43, 12
        s_add_u32 s45, s45, s37
        s_add_u32 s44, s44, {STATS}
        s_add_u32 s45, s45, {STATS}""")
        st_issue()
        k("L_y03:")
        assert ybp
    if not ybp and 'y' not in order: yb_dma()
    wpf_at(9)
    if not xrp: xres_load()
    wpf_at(8)

    YB, RES, ZA, YA, CN, XFR, ACC, XO = 32, 64, 96, 132, 164, 176, 208, 224
    vYB = 236
    vGA, vGB1, vIW, vYR, vXA, vSWr, vSR, vXO, vGB0, vBIG, TG = 4, 5, 6, 7, 8, 9, 10, 11, 24, 25, 232
    k(f"""ds_read_b128 {vr(vGA,4)}, v{vL16} offset:{LT+9*1024}
    ds_read_b128 {vr(vXA,4)}, v{vL16} offset:{LT+10*1024}
    ds_read_b64 {vr(vE0,2)}, v{vL16} offset:{LT+11*1024+8}
    v_and_b32 v{vST0}, 0x1f8, v0
    v_sub_u32 v{vST1}, {SACC+1024+504}, v{vST0}
    v_add_u32 v{vST0}, {SACC}, v{vST0}
    s_and_b32 s52, s3, 3
    s_lshl_b32 s36, s52, 13
    s_add_u32 s36, s36, {YBL}
    v_add_u32 v{vYB}, s36, v{vL16}""")
    def yb_read():
        for u in range(8): k(f"ds_read_b128 {vr(YB+4*u,4)}, v{vYB} offset:{1024*u}")
    k(f"""s_lshl_b32 s48, s40, 11
    s_lshl_b32 s49, s42, 8
    s_add_u32 s48, s48, s49
    s_add_u32 s48, s48, {ZB}
    s_lshl_b32 s36, s3, 16
    s_sub_u32 s49, s48, s36
    s_add_u32 s48, s48, s36
    s_add_u32 s32, s48, {32*16384}
    s_add_u32 s33, s49, {61*16384}
    s_add_u32 s49, s49, {93*16384}
    s_cmp_eq_u32 s41, 0
    s_mov_b32 s50, 0xbc00bc00
    s_cmov_b32 s50, 0x3c003c00
    s_lshr_b32 s51, s3, 2
    s_cmp_eq_u32 s3, 0
    s_cselect_b32 s38, 0xffff, 0
    s_mov_b32 s39, 0
    v_mov_b32 v{TG}, s25
    v_mov_b32 v{TG+1}, s26
    v_mov_b32 v{TG+2}, s27
    v_mov_b32 v{TG+3}, s28
    v_mov_b32 v{vBIG}, 0x40000000
    s_lshl_b32 s36, s3, 10
    s_lshl_b32 s37, s51, 6
    s_waitcnt lgkmcnt(0)
    v_add_u32 v{vGB0}, 0x100000, v{vGB1}
    v_add_u32 v{vIW}, s36, v{vIW}
    v_cndmask_b32_e64 v{vGB0}, v{vGB0}, v{vGB1}, s[38:39]
    v_xor_b32 v{vYR}, s37, v{vYR}
    s_mul_i32 s36, s52, {32*SRS}
    s_lshl_b32 s37, s51, 5
    v_add_u32 v{vXO}, s36, v{vXO}
    s_add_u32 s36, s36, s37
    s_mul_i32 s37, s3, {8*SRS}
    v_add_u32 v{vSWr}, s36, v{vSWr}
    v_add_u32 v{vSR}, s37, v{vSR}""")
    def z_issue():
        k(f"""buffer_load_dwordx4 {vr(ZA,4)}, v{vGA}, {SW}, s48 offen {plz}
        buffer_load_dwordx4 {vr(ZA+4,4)}, v{vGB0}, {SW}, s33 offen {plz}
        buffer_load_dwordx4 {vr(ZA+8,4)}, v{vGA}, {SW}, s32 offen {plz}
        buffer_load_dwordx4 {vr(ZA+12,4)}, v{vGB1}, {SW}, s49 offen {plz}""")
    def z_check():
        for i in range(16): k(f"v_xor_b32 v{ZA+i}, v{TG+i%4}, v{ZA+i}")
        or_tree(range(ZA, ZA + 16), 16); k("v_and_b32 v16, 0x30003, v16\nv_cmp_ne_u32 vcc, 0, v16")
    def selprep():
        k(f"""v_readfirstlane_b32 s46, v16
        v_readfirstlane_b32 s47, v17
        s_and_b32 s46, s46, 0xffff
        s_and_b32 s47, s47, 0xffff
        s_sub_u32 s46, 0xffff, s46
        s_sub_u32 s47, 0xffff, s47""")
        for q in range(4):
            k(f"""v_lshrrev_b32 v16, 11, v{vOF+q}
            v_cmp_eq_u32 s[{52+2*q}:{53+2*q}], s46, v16
            v_cmp_eq_u32 vcc, s47, v16
            s_or_b64 s[{52+2*q}:{53+2*q}], s[{52+2*q}:{53+2*q}], vcc
            v_cndmask_b32_e64 v{20+q}, v{vOF+q}, v{vBIG}, s[{52+2*q}:{53+2*q}]""")
    if yo:
        assert not xrp and not yexp and not ({4, 5} & {wpa, wpb})
        e_issue = lambda: k(f"buffer_load_dwordx2 {vr(CN,2)}, v{vE0}, {SW}, s45 offen sc1\nbuffer_load_dwordx2 {vr(CN+2,2)}, v{vE1}, {SW}, s45 offen sc1")
        k("s_cmp_lg_u32 s3, 5\ns_cbranch_scc1 L_y02")
        poll(st_issue, lambda: check_word([ST + 2, ST + 6, ST + 10, ST + 14]), 's63', issued=True, vm=4 + wp8 + wp9)
        k(f"v_lshlrev_b32 v16, 3, v{vL}")
        for i in range(4): k(f"v_add_f32 v{ST+4*i}, 1.0, v{ST+4*i}\nds_write_b64 v16, {vr(ST+4*i,2)} offset:{SACC+512*i}")
        k("L_y02:\ns_cmp_lg_u32 s3, 7\ns_cbranch_scc1 L_y1")
        cand_top2(CN, vL16, 's63', issued=True, vm=4 + wp8 + wp9)
        k(f"v_mov_b32 v16, s46\nv_mov_b32 v17, s47\nv_mov_b32 v18, 0\nds_write_b64 v18, v[16:17] offset:{TOPL}\nL_y1:")
        k(f"""s_lshl_b32 s37, s40, {6 if extl else 13}
        s_lshl_b32 s38, s42, {3 if extl else 10}
        s_add_u32 s37, s37, s38
        s_add_u32 s45, s37, {EXT}
        v_mov_b32 v18, 0
        s_waitcnt vmcnt({6+wp8+wp9}) lgkmcnt(0)
        s_barrier""")
        stamp(5)
        wpf_at(7)
        k("s_cmp_lg_u32 s3, 6\ns_cbranch_scc1 L_y0")
        e_issue()
        k("L_y0:")
        z_issue()
        wpf_at(3)
        k(f"ds_read_b64 v[16:17], v18 offset:{TOPL}\nds_read2_b64 {vr(ST,4)}, v{vST0} offset1:64\nds_read2_b64 {vr(ST+4,4)}, v{vST1} offset1:64")
        yb_read()
        k("s_waitcnt lgkmcnt(10)")
        selprep()
        k(f"s_waitcnt vmcnt({4+wp3+wp8})")
    else:
        k(f"""s_cmp_lt_u32 s3, 5
        s_cbranch_scc1 L_y0
        s_cmp_eq_u32 s3, 5
        s_cbranch_scc1 L_y01
        s_cmp_eq_u32 s3, 6
        s_cbranch_scc1 L_y00
        s_and_b32 s45, s2, {crep-1}
        s_lshl_b32 s45, s45, 11
        s_add_u32 s45, s45, {CAND}""")
        cand_top2(CN, vL16, 's63', issued='issue')
        def st_issue():
            for i in range(4): k(f"buffer_load_dwordx3 {vr(ST+4*i,3)}, v{vL16}, {SW}, s{44+i//2} offen offset:{1024*(i%2)} sc1")
        k(f"""s_branch L_y0
        L_y01:
        s_sub_u32 s45, 16, s43
        s_and_b32 s45, s45, 15
        s_cselect_b32 s37, 0, 16
        s_lshl_b32 s45, s45, 12
        s_lshl_b32 s44, s43, 12
        s_add_u32 s45, s45, s37
        s_add_u32 s44, s44, {STATS}
        s_add_u32 s45, s45, {STATS}""")
        st_issue()
        k(f"""s_branch L_y0
        L_y00:
        s_lshl_b32 s37, s40, {6 if extl else 13}
        s_lshl_b32 s38, s42, {3 if extl else 10}
        s_add_u32 s37, s37, s38
        s_add_u32 s45, s37, {EXT}""")
        e_issue = lambda: k(f"buffer_load_dwordx2 {vr(CN,2)}, v{vE0}, {SW}, s45 offen sc1\nbuffer_load_dwordx2 {vr(CN+2,2)}, v{vE1}, {SW}, s45 offen sc1")
        e_issue()
        k("L_y0:")
        wpf_at(5)
        z_issue()
        wpf_at(3)
        if yexp:
            stamp(10); k(f"s_waitcnt vmcnt({12+wpf})"); stamp(11)
        k("s_cmp_lg_u32 s3, 5\ns_cbranch_scc1 L_y02")
        poll(st_issue, lambda: check_word([ST + 2, ST + 6, ST + 10, ST + 14]), 's63', issued=True, vm=4 + wpf)
        k(f"v_lshlrev_b32 v16, 3, v{vL}")
        for i in range(4): k(f"v_add_f32 v{ST+4*i}, 1.0, v{ST+4*i}\nds_write_b64 v16, {vr(ST+4*i,2)} offset:{SACC+512*i}")
        k(f"L_y02:\ns_cmp_ge_u32 s3, 6\ns_cbranch_scc1 L_w7\ns_waitcnt vmcnt({4+wpf})\nL_w7:\ns_waitcnt vmcnt({6+wpf}) lgkmcnt(0)\ns_barrier")
        stamp(5)
        wpf_at(4)
        k(f"ds_read2_b64 {vr(ST,4)}, v{vST0} offset1:64\nds_read2_b64 {vr(ST+4,4)}, v{vST1} offset1:64")
        yb_read()
    for q in (0, 2, 3, 1):
        sq = ST + 2 * (0, 3, 1, 2)[q]
        for d in range(4):
            r = RES + 8 * q + 2 * d
            k(f"v_lshlrev_b32 v{r}, 16, v{XR+4*q+d}\nv_and_b32 v{r+1}, 0xffff0000, v{XR+4*q+d}")
            if d == 0 and q in (0, 3): k(f"s_waitcnt lgkmcnt({9 if q == 0 else 8})")
            k(f"v_pk_fma_f32 {vr(r,2)}, {vr(r,2)}, {vr(sq,2)}, {vr(sq,2)} op_sel:[0,0,1] op_sel_hi:[1,0,1] neg_lo:[0,0,1] neg_hi:[0,0,1]")
    if not yo:
        k("s_cmp_lg_u32 s3, 7\ns_cbranch_scc1 L_y1")
        cand_top2(CN, vL16, 's63', issued=True, vm=4 + wpf + wp4)
        k(f"v_mov_b32 v16, s46\nv_mov_b32 v17, s47\nv_mov_b32 v18, 0\nds_write_b64 v18, v[16:17] offset:{TOPL}\nL_y1:")
    k("s_cmp_lg_u32 s3, 6\ns_cbranch_scc1 L_y2")
    poll(e_issue, lambda: check_word([CN + 1, CN + 3]), 's63', issued=True, vm=4 + wpf + wp4)
    k(f"""s_cmp_eq_u32 s41, 0
    s_mov_b32 s38, 0x07060100
    s_cmov_b32 s38, 0x05040100
    v_lshrrev_b32 v17, 16, v{CN}
    v_perm_b32 v16, v{CN+2}, v{CN}, s38""")
    setexec(1)
    k(f"v_mov_b32 v{CN}, v16\nv_mov_b32 v{CN+2}, v17")
    setexec(-1)
    k(f"""v_lshrrev_b32 v18, {7 if extl else 1}, v{vE0}
    v_pk_fma_f16 v{CN}, v{CN+2}, s50, v{CN} neg_hi:[0,1,0]
    ds_write_b32 v18, v{CN} offset:{XF}
    L_y2:""")
    stamp(6)
    poll(z_issue, z_check, 's63', issued=True, vm=wp3 + wp4, masked=pm & 1)
    stamp(7)
    k(f"s_cmp_lg_u32 s3, 0\ns_cbranch_scc1 L_y3\ns_cmp_eq_u32 s41, 0\ns_cselect_b64 s[38:39], 0, -1")
    setexec(0xffff)
    k(f"""v_cndmask_b32_e64 v16, v{ZA+4}, v{ZA+6}, s[38:39]
    v_cndmask_b32_e64 v17, v{ZA+5}, v{ZA+7}, s[38:39]
    v_mov_b32 v{ZA+4}, v{ZA+2}
    v_mov_b32 v{ZA+5}, v{ZA+3}
    v_mov_b32 v{ZA+2}, v16
    v_mov_b32 v{ZA+3}, v17
    v_mov_b32 v{ZA+6}, 0
    v_mov_b32 v{ZA+7}, 0""")
    setexec(-1)
    k("L_y3:")
    for a in range(2):
        for d in range(4):
            r = ZA + 8 * a + d
            k(f"v_pk_fma_f16 v{r}, v{r+4}, s50, v{r}" + (" neg_lo:[0,1,0] neg_hi:[0,1,0]" if d >= 2 else ""))
        k(f"ds_write_b128 v{vIW}, {vr(ZA+8*a,4)} offset:{YIMG+8192*a}")
    k("v_mov_b32 v18, 0\ns_waitcnt lgkmcnt(0)\ns_barrier")
    if not yo: k(f"ds_read_b64 v[16:17], v18 offset:{TOPL}")
    def ymf(u): k(f"v_mfma_f32_32x32x16_f16 {vr(ACC,16)}, {vr(YA+4*u,4)}, {vr(YB+4*u,4)}, {vr(ACC,16) if u else 0}")
    def ytr(u):
        for v in range(2): k(f"ds_read_b64_tr_b16 {vr(YA+4*u+2*v,2)}, v{vYR} offset:{YIMG+u*2048+v*512}")
    def stage_out(O):
        pos = {O[j][q]: ACC + 4 * q + j for j in range(4) for q in range(4)}
        for i in range(8):
            k(f"v_cvt_pk_f16_f32 v{SOT+i}, v{pos[2*i]}, v{pos[2*i+1]}")
            if i % 4 == 3: k(f"ds_write_b128 v{vSWr}, {vr(SOT+i-3,4)} offset:{STG+4*(i-3)}")
    k("s_cmp_lg_u32 s51, 0\ns_cbranch_scc1 L_y4")
    for u in range(7): ytr(u)
    k("s_waitcnt lgkmcnt(12)"); ymf(0); ytr(7)
    for u in range(1, 8):
        k(f"s_waitcnt lgkmcnt({14-2*u})"); ymf(u)
        if u == 3 and not yo: selprep()
    stage_out(OP)
    k("s_branch L_y5\nL_y4:")
    for u in range(4): ytr(u); k(f"ds_read_b128 {vr(XFR+4*u,4)}, v{vXA} offset:{XF+32*u}")
    def xo(u):
        for d in range(4):
            if u == 0: k(f"v_pk_mul_f16 v{XO+d}, v{YB+d}, v{XFR+d}")
            else: k(f"v_pk_fma_f16 v{XO+d}, v{YB+4*u+d}, v{XFR+4*u+d}, v{XO+d}")
    for u in range(8):
        k(f"s_waitcnt lgkmcnt({min(10, 22-3*u)})"); ymf(u)
        if u < 4: ytr(u + 4); k(f"ds_read_b128 {vr(XFR+16+4*u,4)}, v{vXA} offset:{XF+128+32*u}")
        if u >= 1: xo(u - 1)
        if u == 0 and not yo: selprep()
    k("s_waitcnt lgkmcnt(0)")
    xo(7)
    k(f"""s_mov_b32 s37, 0x3c003c00
    v_pk_add_f16 v{XO}, v{XO}, v{XO+1}
    v_pk_add_f16 v{XO+2}, v{XO+2}, v{XO+3}
    v_dot2c_f32_f16 v18, s37, v{XO}
    v_dot2c_f32_f16 v18, s37, v{XO+2}
    v_mov_b32 v19, v18
    v_permlane32_swap_b32 v18, v19
    v_add_f32 v18, v18, v19
    v_cvt_f16_f32 v18, v18
    ds_write_b16 v{vXO}, v18 offset:{STG}""")
    stage_out(OM)
    k("L_y5:\ns_mov_b32 s37, 0x42800000\ns_or_b64 s[60:61], s[52:53], s[54:55]\ns_or_b64 s[38:39], s[56:57], s[58:59]\ns_waitcnt lgkmcnt(0)\ns_barrier")
    stamp(8)
    k(f"""ds_read_b128 {vr(ZA,4)}, v{vSR} offset:{STG}
    ds_read_u16 v{ZA+4}, v{vSR} offset:{STG+16}
    ds_read_b128 {vr(ZA+8,4)}, v{vSR} offset:{STG+64*SRS}
    ds_read_u16 v{ZA+12}, v{vSR} offset:{STG+64*SRS+16}
    s_or_b64 s[60:61], s[60:61], s[38:39]
    s_cbranch_scc1 L_sel""")
    def mixq(q):
        a, mir = q // 2, q % 2
        for i in range(8):
            e = 8 - i if mir else i
            k(f"v_fma_mix_f32 v{RES+8*q+i}, v{ZA+8*a+e//2}, s37, v{RES+8*q+i} op_sel:[{e%2},0,0] op_sel_hi:[1,0,0]")
    def selq(q, mix):
        k(f"s_cmp_eq_u64 s[{52+2*q}:{53+2*q}], 0\ns_cbranch_scc1 L_selx{q}")
        if mix: mixq(q)
        k(f"""s_mov_b64 exec, s[{52+2*q}:{53+2*q}]
        v_lshrrev_b32 v16, 11, v{vOF+q}
        v_and_b32 v17, 2047, v{vOF+q}
        v_cmp_eq_u32 vcc, s47, v16
        v_lshlrev_b32 v17, 1, v17
        v_add_u32 v16, 4096, v17
        v_mov_b32 v18, 0xffffff00
        v_cndmask_b32_e64 v16, v17, v16, vcc
        s_mov_b32 s38, {SEL}""")
        for i in range(8): k(f"v_and_or_b32 v{XFR+i}, v{RES+8*q+i}, v18, s29")
        k(f"""buffer_store_dwordx4 {vr(XFR,4)}, v16, {SW}, s38 offen {pss}
        buffer_store_dwordx4 {vr(XFR+4,4)}, v16, {SW}, s38 offen offset:16 {pss}
        s_mov_b64 exec, -1
        L_selx{q}:""")
    def outq(q, sel):
        a, mir = q // 2, q % 2
        if sel and self_:
            k(f"s_cmp_lg_u64 s[{52+2*q}:{53+2*q}], 0\ns_cbranch_scc1 L_selm{q}"); mixq(q); k(f"L_selm{q}:")
        else:
            k(f"s_waitcnt lgkmcnt({3-2*a-mir})"); mixq(q)
            if sel: selq(q, False)
        for d in range(4): k(f"v_cvt_pk_bf16_f32 v{YA+4*q+d}, v{RES+8*q+2*d}, v{RES+8*q+2*d+1}")
        k(f"buffer_store_dwordx4 {vr(YA+4*q,4)}, v{20+q}, {SO}, 0 offen{NO}")
    for q in range(4): outq(q, False)
    stamp(9)
    k("s_branch L_fin\nL_sel:")
    if self_:
        k("s_setprio 2\ns_waitcnt lgkmcnt(0)")
        for q in range(4): selq(q, True)
        k("s_setprio 0")
    for q in range(4): outq(q, True)
    stamp(9)
    k(f"""s_branch L_fin
    L_job2:
    s_mov_b32 s62, 1
    s_mov_b32 s56, 0
    s_mov_b32 s58, 0
    s_mov_b32 s57, s60
    s_mov_b32 s59, s61""")
    for r in (vAP, vAN, vF1, vF2): k(f"v_subrev_u32 v{r}, {2*RS}, v{r}")
    k("s_branch L_job")
    if fastc: cand_wave()

    GB, CS, AC, WB = 64, 128, 160, 224
    vT8, vM8 = 10, 9
    def wd_dma(rows, lds0, row0):
        pass
    k(f"""L_ffn1:
    s_mov_b32 s6, 0x400000
    s_mov_b32 s10, {WSN}
    s_mov_b32 s14, 0x400000
    s_mov_b32 s15, 0x20000
    s_mov_b32 s42, 7340032
    s_mov_b32 s43, 0x20000
    s_lshl_b32 s44, s30, 16
    v_mov_b32 v{vM8}, 0xffffff00
    v_bfe_u32 v16, v{vL}, 2, 4
    v_and_b32 v17, 3, v{vL}
    v_mul_u32_u24 v18, {WDS}, v16
    s_lshl_b32 s38, s3, 8
    v_lshl_add_u32 v11, v17, 3, s38
    v_add_u32 v11, v11, v18
    v_add_u32 v3, {WD0}, v11
    s_mul_i32 s37, s30, 4682
    s_lshr_b32 s37, s37, 16
    s_mul_i32 s38, s37, 14
    s_sub_u32 s38, s30, s38
    s_mul_i32 s37, s37, {16*7168}
    s_lshl_b32 s38, s38, 9
    s_add_u32 s37, s37, s38
    s_add_u32 s48, s37, {AB}
    v_lshrrev_b32 v18, 5, v0
    v_and_b32 v19, 31, v0
    v_mul_u32_u24 v18, 7168, v18
    v_lshl_add_u32 v48, v19, 4, v18
    s_mov_b32 s36, {RED}
    v_lshl_add_u32 v49, v0, 3, s36
    v_lshl_add_u32 v50, v{vL}, 3, s36
    v_lshl_add_u32 v51, v0, 1, s36
    v_and_b32 v18, 1, v{vL}
    v_and_b32 v19, 48, v{vL}
    v_lshl_add_u32 v20, v18, 6, v19
    s_lshl_b32 s38, s3, 7
    s_add_u32 s38, s38, s36
    v_add_u32 v52, s38, v20
    s_lshl_b32 s38, s30, 13
    s_lshl_b32 s39, s3, 10
    s_add_u32 s38, s38, s39
    s_add_u32 s49, s38, {BB}
    v_lshrrev_b32 v20, 3, v0
    v_and_b32 v21, 7, v0
    v_lshlrev_b32 v20, 13, v20
    v_lshl_add_u32 v53, v21, 4, v20
    s_and_b32 s52, s30, 63
    s_lshl_b32 s50, s52, 7
    s_add_u32 s50, s50, {BB}
    s_add_u32 s51, s50, {64*8192}
    s_mov_b32 s53, {SEL}
    v_lshl_add_u32 v54, v0, 2, s36
    v_lshl_add_u32 v55, v{vL}, 2, s36
    s_and_b32 s45, s2, {crep-1}
    s_lshl_b32 s45, s45, 11
    s_add_u32 s45, s45, {CAND}
    s_waitcnt lgkmcnt(0)
    {NONCE}
    v_mov_b32 v{vT8}, s29
    v_mov_b32 v8, 0x40000000
    v_mov_b32 v7, 0""")
    if prew & 6 and pwo < 4:
        k("s_not_b32 s36, s24")
        for i in range(4): k(f"v_mov_b32 v{60+i}, s36")
    bpw = f"buffer_store_dwordx4 v[60:63], v{vL16}, {SW}, s49 offen {ps}"
    if prew & 4 and not pwo: k(f"s_cmp_ge_u32 s30, 112\ns_cbranch_scc1 L_pw\n{bpw}\nL_pw:")
    k("s_cmp_lg_u32 s3, 7\ns_cbranch_scc1 L_f1")
    if cpw < 16: k(f"s_waitcnt vmcnt({cpw})")
    if pwo: cand_top2(32, vL16, 's63', issued='issue')
    if prew & 4 and pwo == 1: k(bpw)
    if prew & 8: k(f"s_and_b32 s36, s52, 62\ns_lshl_b32 s36, s36, 6\ns_add_u32 s36, s36, s53\nbuffer_load_dword v59, off, {SW}, s36 sc1\ns_add_u32 s36, s36, 4096\nbuffer_load_dword v59, off, {SW}, s36 sc1")
    if not pwo: cand_top2(32, vL16, 's63', issued='issue')
    n7 = ((prew >> 2 & 1) * (pwo == 1) + 2 * (prew >> 3 & 1)) if pwo else 0
    k(f"s_waitcnt vmcnt({2 + n7})\ns_barrier")
    stamp(1)
    cand_top2(32, vL16, 's63', issued=True, vm=n7)
    stamp(2)
    k(f"""s_and_b32 s36, s46, 0xffff
    s_sub_u32 s36, 0xffff, s36
    s_and_b32 s37, s47, 0xffff
    s_sub_u32 s37, 0xffff, s37
    s_lshl_b32 s38, s36, 11
    s_lshl_b32 s39, s37, 11
    s_lshl_b32 s33, s32, 7
    s_add_u32 s38, s38, s33
    s_add_u32 s39, s39, s33
    s_mov_b32 m0, {FXS}""")
    setexec(0xff)
    k(f"""buffer_load_dwordx4 v{vL16}, {SX}, s38 offen lds
    s_mov_b32 m0, {FXS+128}
    s_and_b32 s33, s36, 15
    buffer_load_dwordx4 v{vL16}, {SX}, s39 offen lds
    s_lshl_b32 s33, s33, 12
    s_and_b32 s36, s36, 0x7f0
    s_add_u32 s36, s36, s33
    s_add_u32 s36, s36, {STATS}
    s_and_b32 s33, s37, 15
    s_lshl_b32 s33, s33, 12
    s_and_b32 s37, s37, 0x7f0
    s_add_u32 s37, s37, s33
    s_add_u32 s37, s37, {STATS}""")
    setexec(1)
    s_issue = lambda: k(f"buffer_load_dwordx3 v[40:42], off, {SW}, s36 sc1\nbuffer_load_dwordx3 v[44:46], off, {SW}, s37 sc1")
    s_issue()
    setexec(-1)
    k(f"s_cmp_ge_u32 s30, 112\ns_cbranch_scc1 L_f0\ns_mov_b32 m0, {WD0}\ns_mov_b32 s33, s44")
    for i in range(wd1):
        k(f"buffer_load_dwordx4 v{vL16}, {S5}, s33 offen{NW} lds\nbuffer_load_dwordx4 v{vL16}, {S5}, s33 offen offset:1024{NW} lds")
        if i < 15: k(f"s_add_u32 m0, m0, {WDS}\ns_add_u32 s33, s33, {2048 * (5 if i % 4 == 3 else 1)}")
    k(f"s_waitcnt vmcnt({2*wd1})\nL_f0:")
    setexec(1)
    L = k.lab('Q')
    k(f"s_cmp_lt_u32 s30, 112\ns_cbranch_scc1 {L}\ns_waitcnt vmcnt(0)\n{L}:")
    poll(s_issue, lambda: check_word([42, 46]), 's62', issued=True, vm=63)
    k(f"""v_mov_b32 v42, v41
    v_mov_b32 v41, v44
    v_mov_b32 v43, v45
    v_mov_b32 v44, {FPAR}
    ds_write_b128 v44, v[40:43]
    s_waitcnt lgkmcnt(0)""")
    setexec(-1)
    k("s_barrier")
    stamp(3)
    if prew & 4 and pwo in (2, 3): k(bpw)
    k(f"""v_lshrrev_b32 v18, 5, v{vL}
    v_mov_b32 v19, s47
    v_mov_b32 v20, s46
    v_mov_b32_dpp v19, v20 quad_perm:[0,1,2,3] row_mask:0x3 bank_mask:0xf
    s_lshr_b32 s38, s52, 1
    s_lshl_b32 s38, s38, 5
    s_and_b32 s39, s52, 1
    s_lshl_b32 s39, s39, 3
    s_add_u32 s38, s38, s39
    v_and_b32 v16, 16, v{vL}
    v_add3_u32 v17, v21, v16, s38
    v_lshlrev_b32 v16, 12, v18
    v_lshl_add_u32 v7, v17, 2, v16
    v_ashrrev_i32 v16, 31, v19
    v_not_b32 v16, v16
    v_or_b32 v16, 0x80000000, v16
    v_xor_b32 v16, v16, v19
    v_and_b32 v16, 0xffff0000, v16
    v_mul_f32 v16, 0xbfb8aa3b, v16
    v_exp_f32 v16, v16
    v_and_b32 v19, 0xffff, v19
    v_add_f32 v16, 1.0, v16
    v_rcp_f32 v16, v16
    v_sub_u32 v19, 0xffff, v19
    v_lshlrev_b32 v19, 11, v19
    v_lshl_add_u32 v8, v17, 1, v19
    v_cvt_pk_bf16_f32 v16, v16, v16
    v_and_b32 v6, 0xffff0000, v16
    s_branch L_f2
    L_f1:
    v_mul_u32_u24 v16, {GUS}, v16
    s_lshl_b32 s36, s3, 7
    v_lshl_add_u32 v17, v17, 3, s36
    v_add_u32 v4, v16, v17
    v_add_u32 v5, {UPL}, v4
    v_lshl_add_u32 v6, v18, 7, v19
    v_add_u32 v6, {FXS}, v6
    v_mov_b32 v56, {FPAR}
    s_mul_i32 s36, s30, 7168
    s_lshl_b32 s37, s3, 10
    s_add_u32 s36, s36, s37
    s_add_u32 s36, s36, {AB}""")
    apw = f"buffer_store_dwordx4 v[60:63], v{vL16}, {SW}, s36 offen {ps}"
    if prew & 2 and pwo < 2: k(apw)
    if prew & 4 and pwo == 1: k(bpw)
    for i in range(4): k(f"v_mov_b32 v{12+i}, 0x3f803f80")
    k(f"s_waitcnt vmcnt({((prew >> 1 & 1) + (prew >> 2 & 1)) if pwo == 1 else 0})\ns_barrier")
    stamp(1)
    if prew & 2 and pwo in (2, 3): k(apw)
    if prew & 4 and pwo == 3: k(bpw)
    for T in range(4):
        for mat in range(2):
            for ks in range(2):
                r = GB + 4 * ((T * 2 + mat) * 2 + ks)
                for v in range(2): k(f"ds_read_b64_tr_b16 {vr(r+2*v,2)}, v{4+mat} offset:{(32*ks+16*v)*GUS + 32*T}")
    k("s_waitcnt lgkmcnt(0)")
    for j in range(8):
        for ks in range(2): k(f"v_mfma_f32_16x16x32_bf16 {vr(CS+4*j,4)}, v[12:15], {vr(GB+8*j+4*ks,4)}, {vr(CS+4*j,4) if ks else 0}")
    rowsel(16, [CS + 8 * mg for mg in range(4)]); rowsel(17, [CS + 8 * mg + 4 for mg in range(4)])
    k("s_barrier")
    stamp(3)
    k(f"""ds_read_b128 v[20:23], v6
    ds_read_b128 v[24:27], v6 offset:64
    ds_read_b128 v[28:31], v56
    {bpw if prew & 4 and pwo == 2 else ""}
    s_waitcnt lgkmcnt(2)""")
    for j in range(8): k(f"v_mfma_f32_16x16x32_bf16 {vr(AC+4*j,4)}, v[20:23], {vr(GB+8*j,4)}, 0")
    k("s_waitcnt lgkmcnt(0)")
    for j in range(8):
        k(f"v_mfma_f32_16x16x32_bf16 {vr(AC+4*j,4)}, v[24:27], {vr(GB+8*j+4,4)}, {vr(AC+4*j,4)}")
        if j == 0: k("v_pk_mul_f32 v[32:33], v[30:31], v[16:17] op_sel:[0,0] op_sel_hi:[1,0] neg_lo:[1,0] neg_hi:[1,0]")
        if j == 1: k("v_mul_f32 v34, -v30, v17\nv_mul_f32 v35, -v31, v17")
    for i in range(4): rowsel(40 + i, [AC + 8 * mg + 4 * (i // 2) + i % 2 for mg in range(4)])
    k("v_pk_fma_f32 v[40:41], v[40:41], v[28:29], v[32:33]\nv_pk_fma_f32 v[42:43], v[42:43], v[28:29], v[34:35]")
    for i in range(4): k(f"v_and_or_b32 v{40+i}, v{40+i}, v{vM8}, v{vT8}")
    k(f"buffer_store_dwordx4 v[40:43], v{vL16}, {SW}, s36 offen {ps}")
    stamp(4)
    k(f"""L_f2:
    s_cmp_ge_u32 s30, 112
    s_cbranch_scc1 L_red""")
    a_issue = lambda r: k(f"buffer_load_dwordx4 {vr(r,4)}, v48, {SW}, s48 offen {pl}")
    if pa2: a_issue(128)
    k(f"""s_lshr_b32 s36, s3, 1
    s_lshl_b32 s36, s36, 3
    s_and_b32 s37, s3, 1
    s_lshl_b32 s37, s37, 1
    s_add_u32 s36, s36, s37
    s_add_u32 s36, s36, 4
    s_lshl_b32 s36, s36, 11
    s_add_u32 s33, s44, s36
    s_mul_i32 s36, s3, {2*WDS}
    s_add_u32 m0, s36, {WD1}
    s_barrier""")
    for i in range(2):
        k(f"buffer_load_dwordx4 v{vL16}, {S5}, s33 offen{NW} lds\nbuffer_load_dwordx4 v{vL16}, {S5}, s33 offen offset:1024{NW} lds")
        if i < 1: k(f"s_add_u32 m0, m0, {WDS}\ns_add_u32 s33, s33, 2048")
    if wd1 < 16:
        assert False
    if pa2:
        a_issue(132)
        poll2(a_issue, 1, 128, 132, lambda r: check_f32([24, 25, 26, 27], 16, vT8, r), 's61', 5)
    else: poll(lambda: a_issue(24), lambda: check_f32([24, 25, 26, 27], 16, vT8), 's61', masked=pm & 2)
    stamp(10)
    k(f"""v_permlane32_swap_b32 v24, v25
    v_permlane32_swap_b32 v26, v27
    v_add_f32 v24, v24, v25
    v_add_f32 v25, v26, v27
    ds_write_b64 v49, v[24:25] offset:{RED-RED}
    s_waitcnt vmcnt({1 if pa2 else 0}) lgkmcnt(0)
    s_barrier""")
    b0 = lambda r: k(f"buffer_load_dwordx4 {vr(r,4)}, v53, {SW}, s50 offen {pl}")
    b1 = lambda r: (b0(r), k(f"buffer_load_dwordx4 {vr(r+4,4)}, v53, {SW}, s51 offen {pl}"))
    b7 = lambda r: (b0(r), k(f"buffer_load_dword v{r+4}, v7, {SW}, s53 offen {pl}"))
    def b_early():
        assert red0 == 48
        k(f"s_cmp_lt_u32 s30, {red0}\ns_cbranch_scc1 L_be\ns_cmp_ge_u32 s3, 6\ns_cbranch_scc1 L_be6"); b1(136)
        k("s_branch L_be\nL_be6:\ns_cmp_eq_u32 s3, 7\ns_cbranch_scc1 L_be7"); b0(136)
        k("s_branch L_be\nL_be7:"); b7(136); k("L_be:")
    if pb2 == 1: b_early()
    for i in range(8): k(f"ds_read_b64 {vr(32+2*i,2)}, v50 offset:{RED-RED+512*i}")
    wb = [f"ds_read_b64_tr_b16 {vr(WB+4*T+2*v,2)}, v{11 if v else 3} offset:{32*T}" for T in range(8) for v in range(2)]
    for i in range(6): k(wb.pop(0))
    for i in range(4): k(f"s_waitcnt lgkmcnt({12-2*i})\nv_pk_add_f32 {vr(32+4*i,2)}, {vr(32+4*i,2)}, {vr(34+4*i,2)}")
    k(f"""v_pk_add_f32 v[32:33], v[32:33], v[36:37]
    v_pk_add_f32 v[40:41], v[40:41], v[44:45]""")
    for i in range(7): k(wb.pop(0))
    if pb2 == 2: b_early()
    k(f"""v_pk_add_f32 v[32:33], v[32:33], v[40:41]
    v_cvt_pk_bf16_f32 v33, v32, v33
    v_lshlrev_b32 v32, 16, v33
    v_mul_f32 v34, 0xbfb8aa3b, v32
    v_exp_f32 v34, v34
    v_and_b32 v33, 0xffff0000, v33
    v_add_f32 v34, 1.0, v34
    v_rcp_f32 v34, v34
    s_waitcnt lgkmcnt(6)""")
    for i in range(3): k(wb.pop(0))
    k(f"""v_mul_f32 v32, v32, v34
    v_cvt_pk_bf16_f32 v32, v32, v32
    v_and_b32 v32, 0xffff0000, v32
    v_mul_f32 v32, v32, v33
    v_cvt_pk_bf16_f32 v32, v32, v32
    ds_write_b16 v51, v32 offset:{HB-RED}
    ds_read_b128 v[36:39], v52 offset:{HB-RED}
    s_waitcnt lgkmcnt(0)""")
    for T in range(8): k(f"v_mfma_f32_16x16x32_bf16 {vr(64+4*T,4)}, v[36:39], {vr(WB+4*T,4)}, 0")
    for i in range(4): rowsel(40 + i, [64 + 8 * mg + 4 * (i // 2) + i % 2 for mg in range(4)])
    for i in range(4): k(f"v_and_or_b32 v{40+i}, v{40+i}, v{vM8}, v{vT8}")
    k(f"buffer_store_dwordx4 v[40:43], v{vL16}, {SW}, s49 offen {ps}")
    stamp(11)
    k(f"""L_red:
    s_sub_u32 s36, s30, {red0}
    s_cmp_ge_u32 s36, 64
    s_cbranch_scc1 L_fin""")
    stamp(5)
    def b_poll(issue, n, nr):
        if pb2:
            issue(144); poll2(issue, n, 136, 144, lambda r: check_f32(range(20, 20 + nr), 16, vT8, r), 's60', n + 1)
        else: poll(lambda: issue(20), lambda: check_f32(range(20, 20 + nr), 16, vT8), 's60', masked=pm & 4)
    k("s_cmp_ge_u32 s3, 6\ns_cbranch_scc1 L_r2")
    b_poll(b1, 2, 8)
    k(f"v_pk_add_f32 v[20:21], v[20:21], v[24:25]\nv_pk_add_f32 v[22:23], v[22:23], v[26:27]\ns_branch L_r3\nL_r2:\ns_cmp_eq_u32 s3, 7\ns_cbranch_scc1 L_r4")
    b_poll(b0, 1, 4)
    k("s_branch L_r3\nL_r4:")
    s_chk = lambda: k(f"v_xor_b32 v25, v{vT8}, v24\nv_and_b32 v16, 0xff, v25\nv_cmp_ne_u32 vcc, 0, v16")
    s_iss = lambda: k(f"buffer_load_dword v24, v7, {SW}, s53 offen {pl}")
    if seld:
        b_poll(b7, 2, 4); s_chk()
        k("s_mov_b64 s[54:55], vcc\ns_cbranch_vccz L_r3"); s_iss()
    else: b_poll(b7, 2, 5)
    k("L_r3:")
    stamp(6)
    k(f"""v_permlane32_swap_b32 v20, v21
    v_permlane32_swap_b32 v22, v23
    v_add_f32 v20, v20, v21
    v_add_f32 v22, v22, v23
    v_permlane16_swap_b32 v20, v22
    v_add_f32 v20, v20, v22
    v_add_f32_dpp v20, v20, v20 row_ror:8 {FULL}
    ds_write_b32 v54, v20 offset:{FRED-RED}
    s_waitcnt lgkmcnt(0)
    s_barrier
    s_cmp_lg_u32 s3, 7
    s_cbranch_scc1 L_fin""")
    for i in range(8): k(f"ds_read_b32 v{32+i}, v55 offset:{FRED-RED+256*i}")
    k(f"""s_waitcnt lgkmcnt(4)
    v_pk_add_f32 v[32:33], v[32:33], v[34:35]
    s_waitcnt lgkmcnt(0)
    v_pk_add_f32 v[36:37], v[36:37], v[38:39]
    v_pk_add_f32 v[32:33], v[32:33], v[36:37]
    v_add_f32 v20, v32, v33
    v_cvt_pk_bf16_f32 v20, v20, v20
    v_and_b32 v20, 0xffff0000, v20
    v_mul_f32 v20, v20, v6
    v_cvt_pk_bf16_f32 v20, v20, v20
    v_and_b32 v20, 0xffff0000, v20""")
    if seld:
        k("s_cmp_eq_u64 s[54:55], 0\ns_cbranch_scc1 L_r5")
        poll(s_iss, s_chk, 's60', issued=True, vm=0)
        k("L_r5:")
    k(f"""v_add_f32 v20, v20, v{25 if seld else 24}
    v_cvt_pk_bf16_f32 v20, v20, v20""")
    setexec(0x00ff00ff00ff00ff)
    k(f"""buffer_store_short v20, v8, {SO}, 0 offen{["", " sc1", " sc0 sc1"][fsc]}
    s_cmp_lg_u32 s52, 0
    s_cbranch_scc1 L_fin
    v_mov_b32 v16, s24""")
    setexec(1)
    k(f"buffer_store_dword v16, off, {SW}, 0 sc1")
    k("L_fin:")
    if stamps:
        stamp(12)
        k("s_waitcnt vmcnt(0)")
        stamp(13)
        k(f"""s_mov_b64 exec, -1
        s_waitcnt lgkmcnt(0)
        s_lshl_b32 s36, s2, 3
        s_add_u32 s36, s36, s3
        s_lshl_b32 s36, s36, 7
        s_add_u32 s36, s36, {STAMP}""")
        for i in range(18): k(f"v_mov_b32 v{16+i}, s{64+2*i}")
        k("v_mov_b32 v34, s63\nv_mov_b32 v35, s60\ns_mov_b64 exec, 1")
        for i in range(5): k(f"buffer_store_dwordx4 {vr(16+4*i,4)}, off, {SW}, s36 offset:{16*i}")
    k("L_end:\ns_endpgm")
    body, nn = add_nops(k.l)
    data = ".p2align 8\nL_tab:\n" + tabs.emit(com) + tabs.emit(yb) + tabs.emit(ra)
    return f"; @launch grid=(256,1,1) block=(512,1,1) lds={LDS}\n" + wrap(name, body) + data, nn

if __name__ == '__main__':
    args = eval(sys.argv[2]) if len(sys.argv) > 2 else {}
    t, nn = gen(**args)
    open(sys.argv[1], 'w').write(t)
    print('lines', t.count('\n'), 'bytes', len(t), 'nop states', nn, 'lds', LDS, LDS_FFT, FXS, RED, HB, FRED)
```
